```python
import torch

def _softmax(x, axis=-1):
    return torch.softmax(x, dim=axis)
def _gelu(x):
    return torch.nn.functional.gelu(x, approximate="tanh")
def _silu(x):
    return torch.nn.functional.silu(x)
def _sigmoid(x):
    return torch.sigmoid(x)
def _layernorm(x, axis=-1, eps=1e-5):
    m = x.mean(dim=axis, keepdim=True)
    v = x.var(dim=axis, keepdim=True, unbiased=False)
    return (x - m) / torch.sqrt(v + eps)
def _scatter_add(tgt, idx, src, axis=0):
    return tgt.clone().index_add_(axis, idx, src)
def _segment_sum(src, seg, n):
    out = torch.zeros((n,) + src.shape[1:], dtype=src.dtype)
    return out.index_add_(0, seg, src)
def _pad(x, pw):
    flat = tuple(v for pair in reversed(pw) for v in pair)
    return torch.nn.functional.pad(x, flat)

kernel_name = 'gated_mix__softmax_full_mha__glu_gated_glu__prompt'

def setup_inputs():

    _w = (lambda a: (lambda t: t.to(torch.bfloat16) if t.is_floating_point() else t)(torch.as_tensor(a)))
    def _A_setup():
        B, S, D = 1, 2048, 640
        return {
            "x": _w((lambda *s: torch.randn(*s, dtype=torch.bfloat16) * 0.05)(B, S, D)),
            "wqkv": _w((lambda *s: torch.randn(*s, dtype=torch.bfloat16) * 0.8)(D, 3 * D)),
            "wo": _w((lambda *s: torch.randn(*s, dtype=torch.bfloat16) * 0.1)(D, D)),
        }
    _A_in = _A_setup()

    def _B_setup():
        B, S, D, F = 1, 2048, 640, 1728
        return {
            "x": _w((lambda *s: torch.randn(*s, dtype=torch.bfloat16) * 0.05)(B, S, D)),
            "w_gate": _w((lambda *s: torch.randn(*s, dtype=torch.bfloat16) * 0.8)(D, F)),
            "w_up": _w((lambda *s: torch.randn(*s, dtype=torch.bfloat16) * 0.05)(D, F)),
            "w_down": _w((lambda *s: torch.randn(*s, dtype=torch.bfloat16) * 0.05)(F, D)),
        }
    _B_in = _B_setup()

    return {
        "A_x": _A_in["x"],
        "A_wqkv": _A_in["wqkv"],
        "A_wo": _A_in["wo"],
        "B_x": _B_in["x"],
        "B_w_gate": _B_in["w_gate"],
        "B_w_up": _B_in["w_up"],
        "B_w_down": _B_in["w_down"],
        "gate_w": _w((lambda *s: torch.randn(*s, dtype=torch.bfloat16) * 0.05)(640) * 16.0),
    }

def reference(A_x, A_wqkv, A_wo, B_x, B_w_gate, B_w_up, B_w_down, gate_w):
    def _A_ref(x, wqkv, wo):
        B, S, D = x.shape
        H = 32; Dh = D // H
        qkv = (lambda x, *d: x.permute(*d))((x @ wqkv).reshape(B, S, 3, H, Dh), 2, 0, 3, 1, 4)
        q, k, v = qkv[0], qkv[1], qkv[2]
        scale = Dh ** -0.5
        scores = torch.einsum("bhqd,bhkd->bhqk", q, k) * scale
        p = _softmax(scores, axis=-1)
        o = torch.einsum("bhqk,bhkd->bhqd", p, v)
        return (lambda x, *d: x.permute(*d))(o, 0, 2, 1, 3).reshape(B, S, D) @ wo

    def _B_ref(x, w_gate, w_up, w_down):
        g = torch.einsum("bsd,df->bsf", x, w_gate)
        u = torch.einsum("bsd,df->bsf", x, w_up)
        h = _sigmoid(g) * u
        return torch.einsum("bsf,fd->bsd", h, w_down)

    x = A_x
    g = _sigmoid((x * gate_w).sum(-1, keepdims=True))
    a = _A_ref(x, A_wqkv, A_wo)
    b = _B_ref(x, B_w_gate, B_w_up, B_w_down)
    return g * a + (1 - g) * b
```

```python
class Asm:
    def __init__(self):
        self.lines = []
        self.vm = []
        self.lg = []
    def __call__(self, s=""):
        for l in s.split("\n"):
            l = l.strip()
            if l:
                self.lines.append("    " + l)
    def label(self, l):
        self.lines.append(l + ":")
    def raw(self, s):
        self.lines.append(s)
    def c(self, s):
        self.lines.append("    ; " + s)
    def vmem(self, s, tag):
        self(s); self.vm.append(tag)
    def lds(self, s, tag):
        self(s); self.lg.append(tag)
    def _need(self, lst, pred):
        last = -1
        for i, t in enumerate(lst):
            if pred(t): last = i
        return last
    def wait(self, vm=None, lg=None, force=False):
        parts = []
        if vm is not None:
            p = (lambda t: True) if vm == 'all' else (vm if callable(vm) else (lambda t: t == vm))
            last = self._need(self.vm, p)
            if last >= 0 or force:
                n = len(self.vm) - 1 - last
                n = min(n, 63)
                parts.append(f"vmcnt({n})")
                self.vm = self.vm[len(self.vm) - n:] if n else []
        if lg is not None:
            p = (lambda t: True) if lg == 'all' else (lg if callable(lg) else (lambda t: t == lg))
            last = self._need(self.lg, p)
            if last >= 0 or force:
                n = len(self.lg) - 1 - last
                n = min(n, 15)
                parts.append(f"lgkmcnt({n})")
                self.lg = self.lg[len(self.lg) - n:] if n else []
        if parts:
            self("s_waitcnt " + " ".join(parts))
    def nop(self, n):
        while n > 0:
            k = min(n, 16)
            self(f"s_nop {k-1}")
            n -= k
    def text(self):
        return "\n".join(self.lines) + "\n"

def vr(b, n=1):
    return f"v{b}" if n == 1 else f"v[{b}:{b+n-1}]"
def sr(b, n=1):
    return f"s{b}" if n == 1 else f"s[{b}:{b+n-1}]"

class Regs:
    def __init__(self, start=0, limit=256):
        self.n = start; self.limit = limit; self.names = {}
    def alloc(self, name, count=1, align=1):
        self.n = (self.n + align - 1) // align * align
        b = self.n
        self.n += count
        assert self.n <= self.limit, f"out of registers at {name}: {self.n}"
        self.names[name] = b
        return b

def srd(a, d, ptr, size):
    a(f"s_mov_b32 s{d}, s{ptr}")
    a(f"s_mov_b32 s{d+1}, s{ptr+1}")
    a(f"s_mov_b32 s{d+2}, {size}")
    a(f"s_mov_b32 s{d+3}, 0x00020000")

def kd(name, vgpr, sgpr=96):
    acc = (vgpr + 3) // 4 * 4
    return f""".p2align 6
.amdhsa_kernel {name}
  .amdhsa_next_free_vgpr {vgpr}
  .amdhsa_next_free_sgpr {sgpr}
  .amdhsa_accum_offset {acc}
  .amdhsa_group_segment_fixed_size 0
  .amdhsa_kernarg_size 88
  .amdhsa_user_sgpr_count 2
  .amdhsa_user_sgpr_kernarg_segment_ptr 1
  .amdhsa_system_sgpr_workgroup_id_x 1
.end_amdhsa_kernel
"""
```

```python
import sys
from asmlib import *
from common import *
import k1
HDR = open('gated_mix__softmax_full_mha__glu_gated_glu__prompt.s.ref').read().split("; Override launch")[0]
def build(parts, path):
    s = HDR
    for name, grid, block, (txt, desc, lds) in parts:
        s += f"; @launch kernel={name} grid=({grid},1,1) block=({block},1,1) lds={lds}\n"
    s += '.amdgcn_target "amdgcn-amd-amdhsa--gfx950"\n.text\n'
    seen = set()
    for name, grid, block, (txt, desc, lds) in parts:
        if name in seen: continue
        seen.add(name); s += txt
    s += '.section .rodata,"a"\n'
    seen = set()
    for name, grid, block, (txt, desc, lds) in parts:
        if name in seen: continue
        seen.add(name); s += desc
    open(path, "w").write(s)
if __name__ == "__main__":
    parts = [("proj_kernel", 256, 512, k1.emit_k1("proj_kernel"))]
    build(parts, "k1only.s")
```

```python
import math, struct
S, D, H, DH, F = 2048, 640, 32, 20, 1728
QF = 0
KF = QF + 32*64*1280
VF = KF + 32*64*1280
HF = VF + 32*64*1344
WDF = HF + 64*108*1024
WOF = WDF + 20*108*1024
GG = WOF + 20*40*1024
OF = GG + 8192
BF = OF + 64*32*1280
WS_END = BF + 64*4*5*4*512
WS_SIZE = 0x10000000
QSCALE = math.log2(math.e) / math.sqrt(DH)
def f2u(x): return struct.unpack("<I", struct.pack("<f", x))[0]
PT = [(0,2),(1,3),(4,6),(5,7), (8,9),(10,12),(11,13),(14,15), (16,18),(17,19),(20,22),(21,23),
      (24,25),(26,28),(27,29),(30,31), (32,33),(34,35),(36,38),(37,39)]
UNIT_PAIRS = [(0,1),(3,4),(5,6),(8,9),(10,11),(13,14),(15,16),(18,19)]
R_SLOTS = [2,7,12,17]
def lut(t):
    v = 0
    for cp in range(8):
        a, hp = cp >> 1, cp & 1
        lp = PT[4*t + a][hp] - 8*t
        assert 0 <= lp < 8
        v |= lp << (4*cp)
    return v
OOB = 0x40000000
VROWS = 21
VT = VROWS*64
VH = 64*VT
```

```python
from asmlib import *
from common import *

WRING = 0
XRING = 98304
K1_LDS = XRING + 3*16384
NSTEP = 20

sXP, sWQ, sWO, sBX, sWG, sWU, sWD, sGW = 4, 6, 8, 10, 12, 14, 16, 18
sWS = 20
dX, dW, dWS = 24, 28, 32
sXCD, sSLOT, sWAVE, sCOL, sRB, sT0, sT1, sT2, sT3 = 36, 37, 38, 39, 40, 41, 42, 43, 44
sXW, sWW, sWK = 45, 46, 47
sC0 = 48
sC1 = 50
sB0, sB1 = 52, 53

def gemm_main(a, kind, R):
    gu = kind == 'gu'
    NT = 2 if gu else 1
    NW = 3 if gu else 5
    pitchL = 384 if gu else 640
    pitchG = 3456 if gu else 3840
    acc, fx, fw = R['acc'], R['fx'], R['fw']
    vWo, vXo, aX, aW = R['vWo'], R['vXo'], R['aX'], R['aW']

    def dma_w(s):
        a(f"s_add_u32 m0, s{sWW}, {WRING + (s % 4)*24576}")
        a(f"s_mov_b32 s{sWK}, {s*32*pitchG}")
        for j in range(3):
            a.vmem(f"buffer_load_dwordx4 {vr(vWo+j)}, {sr(dW,4)}, s{sWK} offen offset:{1024*j} lds", ('w', s))
    def dma_x(b, j):
        a(f"s_add_u32 m0, s{sXW}, {XRING + (b % 3)*16384 + j*1024 - b*128}")
        a("s_nop 0")
        a.vmem(f"buffer_load_dwordx4 {vr(vXo+j)}, {sr(dX,4)}, 0 offen offset:{b*128} lds", ('x', b))
    def reads(s, e1):
        L = []
        b, e = s >> 1, 2*(s & 1) + e1
        for tt in range(NT):
            L.append(f"ds_read_b128 {vr(fx[e1]+4*tt,4)}, {vr(aX+e)} offset:{(b % 3)*16384 + tt*4096}")
        slot = s % 4
        for t in range(NW):
            for u in range(2):
                L.append(f"ds_read_b64_tr_b16 {vr(fw[e1]+4*t+2*u,2)}, {vr(aW + (slot >> 1)*NW + t)} "
                         f"offset:{(slot & 1)*24576 + (16*e1 + 4*u)*pitchL}")
        return L
    def mfmas(st, first):
        L = []
        order = [(tt, t) for t in range(NW) for tt in range(NT)]
        for tt, t in order:
            d = acc + 16*(tt*NW + t)
            A, B = vr(fw[st]+4*t, 4), vr(fx[st]+4*tt, 4)
            if kind == 'v': A, B = B, A
            L.append(f"v_mfma_f32_32x32x16_bf16 {vr(d,16)}, {A}, {B}, {'0' if first else vr(d,16)}")
        return L
    def block(M, Rd, pre=()):
        Rd = list(Rd); pre = list(pre)
        for i, m in enumerate(M):
            a(m)
            if i == 0:
                for f in pre: f()
            for _ in range(2):
                if Rd: a.lds(Rd.pop(0), 'f')
        for r in Rd: a.lds(r, 'f')

    dma_x(0, 0); dma_x(0, 1); dma_w(0); dma_w(1); dma_x(1, 0); dma_x(1, 1); dma_w(2)
    yield 'setup'
    for s in range(NSTEP):
        need = lambda t, s=s: (t[0] == 'w' and t[1] <= s) or (t[0] == 'x' and t[1] <= s >> 1)
        a.wait(vm=need, lg='all')
        a("s_barrier")
        pre = []
        if s + 3 < NSTEP: pre.append(lambda s=s: dma_w(s + 3))
        bx = (s + 4) >> 1
        if bx < NSTEP // 2: pre.append(lambda s=s, bx=bx: dma_x(bx, s & 1))
        if s == 0:
            for f in pre: f()
            for r in reads(0, 0): a.lds(r, 'f')
        else:
            block(mfmas(1, False), reads(s, 0), pre)
        a.wait(lg='all')
        block(mfmas(0, s == 0) if s else mfmas(0, True), reads(s, 1))
    a.wait(lg='all')
    for m in mfmas(1, False): a(m)

def lane_bits(a, R):
    vL, vT = R['vL'], R['vT']
    a(f"v_and_b32 {vr(vL)}, 63, v0")

def emit_k1(name, st="", ):
    a = Asm()
    a.raw(f".globl {name}\n.p2align 8\n.type {name},@function\n{name}:")
    a("s_cmp_ge_u32 s2, 256")
    a(f"s_cbranch_scc1 {name}_end")
    a(f"s_load_dwordx16 s[4:19], s[0:1], 0")
    a(f"s_load_dwordx2 s[{sWS}:{sWS+1}], s[0:1], 80")
    rg = Regs(1, 256)
    R = {}
    vL = rg.alloc('vL'); R['vL'] = vL
    vT = rg.alloc('vT', 8); R['vT'] = vT
    R['vWo'] = rg.alloc('vWo', 3); R['vXo'] = rg.alloc('vXo', 2)
    R['aX'] = rg.alloc('aX', 4); R['aW'] = rg.alloc('aW', 10)
    R['fx'] = [rg.alloc('fx0', 8, 4), rg.alloc('fx1', 8, 4)]
    R['fw'] = [rg.alloc('fw0', 20, 4), rg.alloc('fw1', 20, 4)]
    R['acc'] = rg.alloc('acc', 96, 4)
    nv = rg.n
    vWo, vXo, aX, aW, acc = R['vWo'], R['vXo'], R['aX'], R['aW'], R['acc']
    T = [vT + i for i in range(8)]
    a(f"v_lshrrev_b32 {vr(T[0])}, 6, v0")
    a(f"v_and_b32 {vr(vL)}, 63, v0")
    a(f"v_readfirstlane_b32 s{sWAVE}, {vr(T[0])}")
    a(f"s_and_b32 s{sXCD}, s2, 7")
    a(f"s_lshr_b32 s{sSLOT}, s2, 3")
    a(f"s_cmp_ge_u32 s{sSLOT}, 30")
    a(f"s_cbranch_scc1 {name}_misc")
    a(f"s_and_b32 s{sT0}, s{sXCD}, 3")
    a(f"s_mul_i32 s{sT0}, s{sT0}, 30")
    a(f"s_add_u32 s{sT0}, s{sT0}, s{sSLOT}")
    a(f"s_lshr_b32 s{sCOL}, s{sT0}, 3")
    a(f"s_and_b32 s{sT0}, s{sT0}, 7")
    a(f"s_lshr_b32 s{sRB}, s{sXCD}, 2")
    a(f"s_lshl_b32 s{sRB}, s{sRB}, 3")
    a(f"s_add_u32 s{sRB}, s{sRB}, s{sT0}")
    a(f"s_lshl_b32 s{sXW}, s{sWAVE}, 11")
    a(f"s_mul_i32 s{sWW}, s{sWAVE}, 3072")
    a(f"s_lshl_b32 s{sT0}, s{sRB}, 7")
    a(f"s_lshl_b32 s{sT1}, s{sWAVE}, 4")
    a(f"s_add_u32 s{sT0}, s{sT0}, s{sT1}")
    a(f"s_mul_i32 s{sT0}, s{sT0}, 1280")
    a(f"v_lshrrev_b32 {vr(T[0])}, 3, {vr(vL)}")
    a(f"v_mul_u32_u24 {vr(T[0])}, 1280, {vr(T[0])}")
    a(f"v_add_u32 {vr(T[0])}, s{sT0}, {vr(T[0])}")
    a(f"v_lshrrev_b32 {vr(T[1])}, 4, {vr(vL)}")
    a(f"v_and_b32 {vr(T[2])}, 7, {vr(vL)}")
    a(f"v_xor_b32 {vr(T[1])}, {vr(T[1])}, {vr(T[2])}")
    a(f"v_lshl_add_u32 {vr(vXo)}, {vr(T[1])}, 4, {vr(T[0])}")
    a(f"v_xor_b32 {vr(T[1])}, 4, {vr(T[1])}")
    a(f"v_lshl_add_u32 {vr(vXo+1)}, {vr(T[1])}, 4, {vr(T[0])}")
    a(f"v_add_u32 {vr(vXo+1)}, {8*1280}, {vr(vXo+1)}")
    a(f"s_cmp_ge_u32 s{sCOL}, 6")
    a(f"s_cbranch_scc1 {name}_gu")

    def ds_x_addr(tokmul_shift, wm_s):
        a(f"v_and_b32 {vr(T[0])}, 31, {vr(vL)}")
        a(f"v_lshrrev_b32 {vr(T[1])}, 5, {vr(vL)}")
        a(f"v_bfe_u32 {vr(T[2])}, {vr(vL)}, 1, 3")
        a(f"v_xor_b32 {vr(T[1])}, {vr(T[1])}, {vr(T[2])}")
        a(f"s_lshl_b32 s{sT0}, s{wm_s}, {tokmul_shift + 7}")
        a(f"s_add_u32 s{sT0}, s{sT0}, {XRING}")
        a(f"v_lshl_add_u32 {vr(T[0])}, {vr(T[0])}, 7, s{sT0}")
        for e in range(4):
            a(f"v_xor_b32 {vr(T[2])}, {2*e}, {vr(T[1])}")
            a(f"v_lshl_add_u32 {vr(aX+e)}, {vr(T[2])}, 4, {vr(T[0])}")

    for j in range(3):
        a(f"s_mul_i32 s{sT0}, s{sWAVE}, 192")
        a(f"s_add_u32 s{sT0}, s{sT0}, {64*j}")
        a(f"v_add_u32 {vr(T[0])}, s{sT0}, {vr(vL)}")
        a(f"v_mul_u32_u24 {vr(T[1])}, 1639, {vr(T[0])}")
        a(f"v_lshrrev_b32 {vr(T[1])}, 16, {vr(T[1])}")
        a(f"v_mul_u32_u24 {vr(T[2])}, 40, {vr(T[1])}")
        a(f"v_sub_u32 {vr(T[2])}, {vr(T[0])}, {vr(T[2])}")
        a(f"v_bfe_u32 {vr(T[3])}, {vr(T[1])}, 1, 1")
        a(f"v_lshlrev_b32 {vr(T[3])}, 2, {vr(T[3])}")
        a(f"v_xor_b32 {vr(T[2])}, {vr(T[2])}, {vr(T[3])}")
        a(f"v_mul_u32_u24 {vr(T[1])}, 3840, {vr(T[1])}")
        a(f"v_lshl_add_u32 {vr(T[1])}, {vr(T[2])}, 4, {vr(T[1])}")
        a(f"s_mul_i32 s{sT0}, s{sCOL}, 640")
        a(f"s_sub_u32 s{sT0}, s{sT0}, {1024*j}")
        a(f"v_add_u32 {vr(T[1])}, s{sT0}, {vr(T[1])}")
        a(f"v_cmp_gt_u32 vcc, 1280, {vr(T[0])}")
        a(f"v_mov_b32 {vr(T[2])}, {OOB}")
        a("s_nop 0")
        a(f"v_cndmask_b32 {vr(vWo+j)}, {vr(T[2])}, {vr(T[1])}, vcc")
    a("s_waitcnt lgkmcnt(0)")
    srd(a, dX, sXP, S*D*2)
    srd(a, dW, sWQ, D*3*D*2)
    srd(a, dWS, sWS, WS_SIZE)
    a(f"s_cmp_ge_u32 s{sCOL}, 4")
    a(f"s_cbranch_scc1 {name}_v")

    sWM, sWN = sB0, sB1
    def qkv_setup(kind):
        a(f"s_and_b32 s{sWM}, s{sWAVE}, 3")
        a(f"s_lshr_b32 s{sWN}, s{sWAVE}, 2")
        ds_x_addr(5, sWM)
        a(f"v_lshrrev_b32 {vr(T[0])}, 5, {vr(vL)}")
        a(f"v_bfe_u32 {vr(T[1])}, {vr(vL)}, 2, 2")
        a(f"v_lshl_add_u32 {vr(T[0])}, {vr(T[0])}, 3, {vr(T[1])}")
        a(f"v_mul_u32_u24 {vr(T[0])}, 640, {vr(T[0])}")
        a(f"v_lshrrev_b32 {vr(T[1])}, 1, {vr(T[1])}")
        a(f"v_bfe_u32 {vr(T[2])}, {vr(vL)}, 4, 1")
        a(f"v_and_b32 {vr(T[3])}, 3, {vr(vL)}")
        a(f"v_lshl_add_u32 {vr(T[2])}, {vr(T[2])}, 2, {vr(T[3])}")
        if kind == 'qk':
            a(f"v_lshlrev_b32 {vr(T[2])}, 2, {vr(T[2])}")
        a(f"s_mul_i32 s{sT0}, s{sWN}, 5")
        for t in range(5):
            a(f"s_add_u32 s{sT1}, s{sT0}, {t}")
            a(f"v_xor_b32 {vr(T[3])}, s{sT1}, {vr(T[1])}")
            a(f"v_lshl_add_u32 {vr(T[3])}, {vr(T[3])}, 6, {vr(T[0])}")
            if kind == 'qk':
                a(f"s_mov_b32 s{sT2}, {lut(t):#x}")
                a(f"v_bfe_u32 {vr(T[4])}, s{sT2}, {vr(T[2])}, 3")
                a(f"v_lshl_add_u32 {vr(aW+t)}, {vr(T[4])}, 3, {vr(T[3])}")
            else:
                a(f"v_lshl_add_u32 {vr(aW+t)}, {vr(T[2])}, 3, {vr(T[3])}")
            a(f"v_add_u32 {vr(aW+5+t)}, 49152, {vr(aW+t)}")

    g = gemm_main(a, 'qk', R); next(g); qkv_setup('qk')
    for _ in g: pass
    a(f"s_and_b32 s{sT0}, s{sCOL}, 1")
    a(f"s_lshl_b32 s{sT0}, s{sT0}, 1")
    a(f"s_add_u32 s{sT0}, s{sT0}, s{sWN}")
    a(f"s_mul_i32 s{sT0}, s{sT0}, {8*81920}")
    a(f"s_lshl_b32 s{sT1}, s{sRB}, 2")
    a(f"s_add_u32 s{sT1}, s{sT1}, s{sWM}")
    a(f"s_mul_i32 s{sT1}, s{sT1}, 1280")
    a(f"s_add_u32 s{sT0}, s{sT0}, s{sT1}")
    a(f"s_cmp_ge_u32 s{sCOL}, 2")
    a(f"s_cselect_b32 s{sT1}, {KF}, {QF}")
    a(f"s_cselect_b32 s{sC0}, 1.0, {f2u(QSCALE):#x}")
    a(f"s_mov_b32 s{sC0+1}, s{sC0}")
    a(f"s_add_u32 s{sT0}, s{sT0}, s{sT1}")
    a(f"v_lshlrev_b32 {vr(T[0])}, 4, {vr(vL)}")
    a(f"v_and_b32 {vr(T[1])}, 31, {vr(vL)}")
    a(f"v_lshlrev_b32 {vr(T[1])}, 3, {vr(T[1])}")
    a(f"v_lshrrev_b32 {vr(T[2])}, 5, {vr(vL)}")
    a(f"v_mul_u32_u24 {vr(T[2])}, 81920, {vr(T[2])}")
    a(f"v_add_u32 {vr(T[1])}, {vr(T[1])}, {vr(T[2])}")
    a.nop(6)
    pk = R['fw'][0]
    def scale_pack(slot, dst):
        b = acc + 4*slot
        a(f"v_pk_mul_f32 {vr(b,2)}, {vr(b,2)}, {sr(sC0,2)}")
        a(f"v_pk_mul_f32 {vr(b+2,2)}, {vr(b+2,2)}, {sr(sC0,2)}")
        a(f"v_cvt_pk_bf16_f32 {vr(dst)}, {vr(b)}, {vr(b+1)}")
        a(f"v_cvt_pk_bf16_f32 {vr(dst+1)}, {vr(b+2)}, {vr(b+3)}")
    for h in range(8):
        d = pk + 4*h
        scale_pack(UNIT_PAIRS[h][0], d); scale_pack(UNIT_PAIRS[h][1], d+2)
        a(f"s_add_u32 s{sT1}, s{sT0}, {h*81920}")
        a.vmem(f"buffer_store_dwordx4 {vr(d,4)}, {vr(T[0])}, {sr(dWS,4)}, s{sT1} offen{st}", 'st')
        if h & 1:
            d2 = pk + 32 + 2*(h >> 1)
            scale_pack(R_SLOTS[h >> 1], d2)
            a(f"s_add_u32 s{sT2}, s{sT0}, {(h-1)*81920}")
            a.vmem(f"buffer_store_dwordx2 {vr(d2,2)}, {vr(T[1])}, {sr(dWS,4)}, s{sT2} offen offset:1024{st}", 'st')
    a("s_endpgm")
    a.vm = []; a.lg = []

    a.label(f"{name}_v")
    g = gemm_main(a, 'v', R); next(g); qkv_setup('v')
    for _ in g: pass
    a(f"s_and_b32 s{sT0}, s{sCOL}, 1")
    a(f"s_lshl_b32 s{sT0}, s{sT0}, 1")
    a(f"s_add_u32 s{sT0}, s{sT0}, s{sWN}")
    a(f"s_mul_i32 s{sT0}, s{sT0}, {8*86016}")
    a(f"s_lshl_b32 s{sT1}, s{sRB}, 2")
    a(f"s_add_u32 s{sT1}, s{sT1}, s{sWM}")
    a(f"s_mul_i32 s{sT1}, s{sT1}, 1344")
    a(f"s_add_u32 s{sT0}, s{sT0}, s{sT1}")
    a(f"s_add_u32 s{sT0}, s{sT0}, {VF}")
    a(f"v_bfe_u32 {vr(T[0])}, {vr(vL)}, 2, 3")
    a(f"v_mul_u32_u24 {vr(T[0])}, 86016, {vr(T[0])}")
    a(f"v_and_b32 {vr(T[1])}, 3, {vr(vL)}")
    a(f"v_mul_u32_u24 {vr(T[1])}, 336, {vr(T[1])}")
    a(f"v_add_u32 {vr(T[0])}, {vr(T[0])}, {vr(T[1])}")
    for i in range(4):
        a(f"v_mov_b32 {vr(pk+i)}, 0x3f803f80")
    a.vmem(f"buffer_store_dwordx4 {vr(pk,4)}, {vr(T[0])}, {sr(dWS,4)}, s{sT0} offen offset:320{st}", 'st')
    a(f"v_and_b32 {vr(T[1])}, 31, {vr(vL)}")
    a(f"v_lshrrev_b32 {vr(T[2])}, 5, {vr(vL)}")
    a(f"v_mul_u32_u24 {vr(T[2])}, 336, {vr(T[2])}")
    for t in range(5):
        a(f"v_add_u32 {vr(T[3])}, {32*t}, {vr(T[1])}")
        a(f"v_mul_u32_u24 {vr(T[4])}, 3277, {vr(T[3])}")
        a(f"v_lshrrev_b32 {vr(T[4])}, 16, {vr(T[4])}")
        a(f"v_mul_u32_u24 {vr(T[5])}, 20, {vr(T[4])}")
        a(f"v_sub_u32 {vr(T[3])}, {vr(T[3])}, {vr(T[5])}")
        a(f"v_mul_u32_u24 {vr(T[4])}, 86016, {vr(T[4])}")
        a(f"v_lshl_add_u32 {vr(T[3])}, {vr(T[3])}, 4, {vr(T[4])}")
        a(f"v_add_u32 {vr(aW+t)}, {vr(T[3])}, {vr(T[2])}")
    for t in range(5):
        for p in range(2):
            d = pk + 4 + 4*((2*t + p) % 8)
            b = acc + 16*t + 8*p
            for i in range(4):
                a(f"v_cvt_pk_bf16_f32 {vr(d+i)}, {vr(b+2*i)}, {vr(b+2*i+1)}")
            a.vmem(f"buffer_store_dwordx4 {vr(d,4)}, {vr(aW+t)}, {sr(dWS,4)}, s{sT0} offen offset:{672*p}{st}", 'st')
    a("s_endpgm")
    a.vm = []; a.lg = []

    a.label(f"{name}_gu")
    sM = sT3
    a(f"s_lshr_b32 s{sM}, s{sWAVE}, 2")
    for j in range(3):
        a(f"s_and_b32 s{sT0}, s{sWAVE}, 3")
        a(f"s_mul_i32 s{sT0}, s{sT0}, 192")
        a(f"s_add_u32 s{sT0}, s{sT0}, {64*j}")
        a(f"v_add_u32 {vr(T[0])}, s{sT0}, {vr(vL)}")
        a(f"v_mul_u32_u24 {vr(T[1])}, 2731, {vr(T[0])}")
        a(f"v_lshrrev_b32 {vr(T[1])}, 16, {vr(T[1])}")
        a(f"v_mul_u32_u24 {vr(T[2])}, 24, {vr(T[1])}")
        a(f"v_sub_u32 {vr(T[2])}, {vr(T[0])}, {vr(T[2])}")
        a(f"v_and_b32 {vr(T[3])}, 2, {vr(T[1])}")
        a(f"s_lshl_b32 s{sT1}, s{sM}, 2")
        a(f"v_or_b32 {vr(T[3])}, s{sT1}, {vr(T[3])}")
        a(f"v_xor_b32 {vr(T[2])}, {vr(T[2])}, {vr(T[3])}")
        a(f"v_mul_u32_u24 {vr(T[1])}, 3456, {vr(T[1])}")
        a(f"v_lshl_add_u32 {vr(T[1])}, {vr(T[2])}, 4, {vr(T[1])}")
        a(f"s_sub_u32 s{sT0}, s{sCOL}, 6")
        a(f"s_mul_i32 s{sT0}, s{sT0}, 384")
        a(f"s_sub_u32 s{sT0}, s{sT0}, {1024*j}")
        a(f"v_add_u32 {vr(vWo+j)}, s{sT0}, {vr(T[1])}")
    a("s_waitcnt lgkmcnt(0)")
    srd(a, dX, sXP, S*D*2)
    a(f"s_cmp_eq_u32 s{sM}, 0")
    a(f"s_cselect_b32 s{dW}, s{sWG}, s{sWU}")
    a(f"s_cselect_b32 s{dW+1}, s{sWG+1}, s{sWU+1}")
    a(f"s_mov_b32 s{dW+2}, {D*F*2}")
    a(f"s_mov_b32 s{dW+3}, 0x00020000")
    srd(a, dWS, sWS, WS_SIZE)
    g = gemm_main(a, 'gu', R); next(g)
    a(f"s_and_b32 s{sWM}, s{sWAVE}, 1")
    a(f"s_lshr_b32 s{sWN}, s{sWAVE}, 1")
    ds_x_addr(6, sWM)
    a(f"v_lshrrev_b32 {vr(T[0])}, 5, {vr(vL)}")
    a(f"v_bfe_u32 {vr(T[1])}, {vr(vL)}, 2, 2")
    a(f"v_lshl_add_u32 {vr(T[0])}, {vr(T[0])}, 3, {vr(T[1])}")
    a(f"v_mul_u32_u24 {vr(T[0])}, 384, {vr(T[0])}")
    a(f"v_bfe_u32 {vr(T[2])}, {vr(vL)}, 1, 1")
    a(f"v_mul_u32_u24 {vr(T[3])}, 12288, {vr(T[2])}")
    a(f"v_add_u32 {vr(T[0])}, {vr(T[0])}, {vr(T[3])}")
    a(f"v_lshrrev_b32 {vr(T[1])}, 1, {vr(T[1])}")
    a(f"v_lshl_add_u32 {vr(T[1])}, {vr(T[2])}, 1, {vr(T[1])}")
    a(f"v_bfe_u32 {vr(T[2])}, {vr(vL)}, 4, 1")
    a(f"v_lshl_add_u32 {vr(T[0])}, {vr(T[2])}, 4, {vr(T[0])}")
    a(f"v_and_b32 {vr(T[2])}, 1, {vr(vL)}")
    a(f"v_lshl_add_u32 {vr(T[0])}, {vr(T[2])}, 3, {vr(T[0])}")
    a(f"s_mul_i32 s{sT0}, s{sWN}, 3")
    for t in range(3):
        a(f"s_add_u32 s{sT1}, s{sT0}, {t}")
        a(f"v_xor_b32 {vr(T[3])}, s{sT1}, {vr(T[1])}")
        a(f"v_lshl_add_u32 {vr(aW+t)}, {vr(T[3])}, 5, {vr(T[0])}")
        a(f"v_add_u32 {vr(aW+3+t)}, 49152, {vr(aW+t)}")
    for _ in g: pass
    a(f"s_lshl_b32 s{sT0}, s{sRB}, 1")
    a(f"s_add_u32 s{sT0}, s{sT0}, s{sWM}")
    a(f"s_mul_i32 s{sT0}, s{sT0}, {2*108}")
    a(f"s_sub_u32 s{sT1}, s{sCOL}, 6")
    a(f"s_mul_i32 s{sT1}, s{sT1}, 12")
    a(f"s_add_u32 s{sT0}, s{sT0}, s{sT1}")
    a(f"s_mul_i32 s{sT1}, s{sWN}, 3")
    a(f"s_add_u32 s{sT0}, s{sT0}, s{sT1}")
    a(f"s_lshl_b32 s{sT0}, s{sT0}, 10")
    a(f"s_add_u32 s{sT0}, s{sT0}, {HF}")
    a(f"s_add_u32 s{sT1}, s{sT0}, {108*1024}")
    a(f"s_mov_b32 s{sC0}, {f2u(-math.log2(math.e)):#x}")
    a(f"s_mov_b32 s{sC0+1}, s{sC0}")
    a(f"s_mov_b32 s{sC1}, 1.0")
    a(f"s_mov_b32 s{sC1+1}, 1.0")
    a(f"v_lshlrev_b32 {vr(T[0])}, 4, {vr(vL)}")
    order = [(tt, t) for t in range(3) for tt in range(2)]
    for n, (tt, t) in enumerate(order):
        b = acc + 16*(tt*3 + t)
        d = pk + 4*n
        gs = [b, b+2, b+8, b+10]; us = [b+4, b+6, b+12, b+14]
        for q in gs: a(f"v_pk_mul_f32 {vr(q,2)}, {vr(q,2)}, {sr(sC0,2)}")
        for q in gs:
            a(f"v_exp_f32 {vr(q)}, {vr(q)}"); a(f"v_exp_f32 {vr(q+1)}, {vr(q+1)}")
        for q in gs: a(f"v_pk_add_f32 {vr(q,2)}, {vr(q,2)}, {sr(sC1,2)}")
        for q in gs:
            a(f"v_rcp_f32 {vr(q)}, {vr(q)}"); a(f"v_rcp_f32 {vr(q+1)}, {vr(q+1)}")
        for q, u in zip(gs, us): a(f"v_pk_mul_f32 {vr(q,2)}, {vr(q,2)}, {vr(u,2)}")
        for i, q in enumerate(gs): a(f"v_cvt_pk_bf16_f32 {vr(d+i)}, {vr(q)}, {vr(q+1)}")
        a.vmem(f"buffer_store_dwordx4 {vr(d,4)}, {vr(T[0])}, {sr(dWS,4)}, s{sT1 if tt else sT0} offen offset:{1024*t}{st}", 'st')
    a("s_endpgm")
    a.vm = []; a.lg = []

    a.label(f"{name}_misc")
    sU, sUE = sB0, sB1
    dG = 56
    a(f"s_lshl_b32 s{sT0}, s{sXCD}, 1")
    a(f"s_add_u32 s{sT0}, s{sT0}, s{sSLOT}")
    a(f"s_sub_u32 s{sT0}, s{sT0}, 30")
    a(f"s_lshl_b32 s{sT0}, s{sT0}, 3")
    a(f"s_add_u32 s{sU}, s{sT0}, s{sWAVE}")
    a("s_waitcnt lgkmcnt(0)")
    srd(a, dX, sXP, S*D*2)
    srd(a, dWS, sWS, WS_SIZE)
    srd(a, dG, sGW, D*2)
    gw = acc; xr = acc + 20
    a(f"v_and_b32 {vr(T[0])}, 15, {vr(vL)}")
    a(f"v_lshlrev_b32 {vr(T[0])}, 4, {vr(T[0])}")
    for i in range(5):
        a.vmem(f"buffer_load_dwordx4 {vr(gw+4*i,4)}, {vr(T[0])}, {sr(dG,4)}, 0 offen offset:{256*i}", 'gw')
    a(f"v_lshrrev_b32 {vr(T[1])}, 4, {vr(vL)}")
    a(f"v_mul_u32_u24 {vr(T[2])}, 1280, {vr(T[1])}")
    a(f"v_add_u32 {vr(T[0])}, {vr(T[0])}, {vr(T[2])}")
    xregs = [acc + 20, acc + 40, acc + 60, R['fw'][0]]
    for q in range(4):
        a(f"s_lshl_b32 s{sT0}, s{sU}, 4")
        a(f"s_add_u32 s{sT0}, s{sT0}, {4*q}")
        a(f"s_mul_i32 s{sT0}, s{sT0}, 1280")
        for i in range(5):
            a.vmem(f"buffer_load_dwordx4 {vr(xregs[q]+4*i,4)}, {vr(T[0])}, {sr(dX,4)}, s{sT0} offen offset:{256*i}", ('gx', q))
    vA = R['fw'][1]
    for i in range(10):
        a(f"v_add_u32 {vr(T[2])}, {64*i}, {vr(vL)}")
        a(f"v_mul_u32_u24 {vr(T[3])}, 1639, {vr(T[2])}")
        a(f"v_lshrrev_b32 {vr(T[3])}, 16, {vr(T[3])}")
        a(f"v_mul_u32_u24 {vr(T[4])}, 40, {vr(T[3])}")
        a(f"v_sub_u32 {vr(T[4])}, {vr(T[2])}, {vr(T[4])}")
        a(f"v_and_b32 {vr(T[5])}, 2, {vr(T[3])}")
        a(f"v_lshlrev_b32 {vr(T[5])}, 1, {vr(T[5])}")
        a(f"v_xor_b32 {vr(T[4])}, {vr(T[4])}, {vr(T[5])}")
        a(f"v_lshlrev_b32 {vr(T[4])}, 4, {vr(T[4])}")
        a(f"v_mul_u32_u24 {vr(T[5])}, 1280, {vr(T[3])}")
        a(f"v_add_u32 {vr(vA+i)}, {vr(T[5])}, {vr(T[4])}")
        a(f"v_lshrrev_b32 {vr(T[5])}, 2, {vr(T[3])}")
        a(f"v_mul_u32_u24 {vr(T[5])}, {16*1280}, {vr(T[5])}")
        a(f"v_add_u32 {vr(vA+10+i)}, {vr(vA+i)}, {vr(T[5])}")
    aR = aX
    a(f"v_lshrrev_b32 {vr(T[2])}, 5, {vr(vL)}")
    a(f"v_bfe_u32 {vr(T[3])}, {vr(vL)}, 2, 2")
    a(f"v_lshl_add_u32 {vr(T[2])}, {vr(T[2])}, 2, {vr(T[3])}")
    a(f"v_mul_u32_u24 {vr(T[2])}, 640, {vr(T[2])}")
    a(f"v_bfe_u32 {vr(T[4])}, {vr(vL)}, 4, 1")
    a(f"v_and_b32 {vr(T[5])}, 3, {vr(vL)}")
    a(f"v_lshl_add_u32 {vr(T[4])}, {vr(T[4])}, 2, {vr(T[5])}")
    a(f"v_lshl_add_u32 {vr(T[2])}, {vr(T[4])}, 3, {vr(T[2])}")
    a(f"s_mul_i32 s{sWW}, s{sWAVE}, 10240")
    a(f"v_add_u32 {vr(T[2])}, s{sWW}, {vr(T[2])}")
    a(f"v_lshrrev_b32 {vr(T[3])}, 1, {vr(T[3])}")
    a(f"v_lshl_add_u32 {vr(aR)}, {vr(T[3])}, 6, {vr(T[2])}")
    a(f"v_xor_b32 {vr(T[3])}, 1, {vr(T[3])}")
    a(f"v_lshl_add_u32 {vr(aR+1)}, {vr(T[3])}, 6, {vr(T[2])}")
    a(f"v_lshlrev_b32 {vr(aR+2)}, 4, {vr(vL)}")
    for q in range(4):
        a.wait(vm=('gx', q))
        z = T[4 + q] if q < 4 else None
        a(f"v_mov_b32 {vr(z)}, 0")
        for i in range(20):
            a(f"v_dot2_f32_bf16 {vr(z)}, {vr(xregs[q]+i)}, {vr(gw+i)}, {vr(z)}")
    a.nop(3)
    for sh in ("row_ror:8", "row_ror:4", "row_ror:2", "row_ror:1"):
        for q in range(4):
            z = T[4 + q]
            a(f"v_add_f32_dpp {vr(z)}, {vr(z)}, {vr(z)} {sh} row_mask:0xf bank_mask:0xf")
    a(f"v_and_b32 {vr(T[2])}, 15, {vr(vL)}")
    for q in range(1, 4):
        a(f"v_cmp_eq_u32 vcc, {q}, {vr(T[2])}")
        a("s_nop 1")
        a(f"v_cndmask_b32 {vr(T[4])}, {vr(T[4])}, {vr(T[4+q])}, vcc")
    a(f"v_mul_f32 {vr(T[4])}, {f2u(-math.log2(math.e)):#x}, {vr(T[4])}")
    a(f"v_exp_f32 {vr(T[4])}, {vr(T[4])}")
    a("s_nop 0")
    a(f"v_add_f32 {vr(T[4])}, 1.0, {vr(T[4])}")
    a(f"v_rcp_f32 {vr(T[4])}, {vr(T[4])}")
    a(f"v_lshl_add_u32 {vr(T[3])}, {vr(T[2])}, 2, {vr(T[1])}")
    a(f"v_lshlrev_b32 {vr(T[3])}, 2, {vr(T[3])}")
    a(f"v_cmp_gt_u32 vcc, 4, {vr(T[2])}")
    a(f"v_mov_b32 {vr(T[5])}, {OOB}")
    a("s_nop 0")
    a(f"v_cndmask_b32 {vr(T[3])}, {vr(T[5])}, {vr(T[3])}, vcc")
    a(f"s_lshl_b32 s{sT0}, s{sU}, 6")
    a(f"s_add_u32 s{sT0}, s{sT0}, {GG}")
    a(f"buffer_store_dword {vr(T[4])}, {vr(T[3])}, {sr(dWS,4)}, s{sT0} offen{st}")
    sKS, sHF, sSRC, sDST, sDS2 = 60, 61, 62, 63, 64
    a.label(f"{name}_unit")
    a.vm = []; a.lg = []
    a(f"s_lshr_b32 s{sKS}, s{sU}, 1")
    a(f"s_and_b32 s{sHF}, s{sU}, 1")
    a(f"s_cmp_ge_u32 s{sKS}, 108")
    a(f"s_cbranch_scc1 {name}_unit_wo")
    srd(a, dW, sWD, F*D*2)
    a(f"s_mul_i32 s{sSRC}, s{sKS}, {16*1280}")
    a(f"s_mul_i32 s{sDST}, s{sHF}, {10*110592}")
    a(f"s_lshl_b32 s{sT0}, s{sKS}, 10")
    a(f"s_add_u32 s{sDST}, s{sDST}, s{sT0}")
    a(f"s_add_u32 s{sDST}, s{sDST}, {WDF}")
    a(f"s_mov_b32 s{sDS2}, 110592")
    a(f"s_branch {name}_unit_plain")
    a.label(f"{name}_unit_wo")
    srd(a, dW, sWO, D*D*2)
    a(f"s_sub_u32 s{sKS}, s{sKS}, 108")
    a(f"s_mul_i32 s{sDST}, s{sHF}, {10*40960}")
    a(f"s_lshl_b32 s{sT0}, s{sKS}, 10")
    a(f"s_add_u32 s{sDST}, s{sDST}, s{sT0}")
    a(f"s_add_u32 s{sDST}, s{sDST}, {WOF}")
    a(f"s_mov_b32 s{sDS2}, 40960")
    a(f"s_mul_i32 s{sSRC}, s{sKS}, {20*1280}")
    a(f"s_cmp_lt_u32 s{sKS}, 32")
    a(f"s_cbranch_scc1 {name}_unit_plain")
    a(f"s_sub_u32 s{sKS}, s{sKS}, 32")
    a(f"s_mul_i32 s{sSRC}, s{sKS}, {80*1280}")
    a(f"s_add_u32 s{sSRC}, s{sSRC}, {16*1280}")
    def unit_dma(base):
        a(f"s_mul_i32 s{sT0}, s{sHF}, 640")
        a(f"s_add_u32 s{sSRC}, s{sSRC}, s{sT0}")
        for i in range(10):
            a(f"s_add_u32 m0, s{sWW}, {1024*i}")
            a("s_nop 0")
            a(f"buffer_load_dwordx4 {vr(base+i)}, {sr(dW,4)}, s{sSRC} offen lds")
    unit_dma(vA + 10)
    a(f"s_branch {name}_unit_go")
    a.label(f"{name}_unit_plain")
    unit_dma(vA)
    a.label(f"{name}_unit_go")
    a("s_waitcnt vmcnt(0)")
    fr = acc
    for n in range(10):
        for u in range(2):
            a.lds(f"ds_read_b64_tr_b16 {vr(fr+4*n+2*u,2)}, {vr(aR + (n & 1))} offset:{128*(n >> 1) + u*8*640}", n)
        if n >= 4:
            a.wait(lg=n-4)
            a(f"buffer_store_dwordx4 {vr(fr+4*(n-4),4)}, {vr(aR+2)}, {sr(dWS,4)}, s{sDST} offen{st}")
            a(f"s_add_u32 s{sDST}, s{sDST}, s{sDS2}")
    for n in range(6, 10):
        a.wait(lg=n)
        a(f"buffer_store_dwordx4 {vr(fr+4*n,4)}, {vr(aR+2)}, {sr(dWS,4)}, s{sDST} offen{st}")
        a(f"s_add_u32 s{sDST}, s{sDST}, s{sDS2}")
    a(f"s_add_u32 s{sU}, s{sU}, 128")
    a(f"s_cmp_lt_u32 s{sU}, 296")
    a("s_waitcnt vmcnt(0)")
    a(f"s_cbranch_scc1 {name}_unit")
    a.label(f"{name}_end")
    a("s_endpgm")
    return a.text(), kd(name, nv), K1_LDS
```

```python
from asmlib import *
from common import *

SLOT = [0, 83968, 41984, 0]
KV_K, KV_V = 20480, 21504
RED = 83968
XCH = 41984
K2_LDS = 163840

sWS = 4
dWS = 8
sXCD, sSLOT, sWAVE, sHEAD, sQB = 12, 13, 14, 15, 16
sT0, sT1, sT2, sT3 = 17, 18, 19, 20
sKB, sVB = 21, 22
sQG, sKH = 23, 24
sHW, sTB, sCG, sKO, sL5 = 25, 26, 27, 28, 29
sOB = 30
sI = 31

def emit_k2(name, st="", helper=True, prio=True):
    a = Asm()
    a.raw(f".globl {name}\n.p2align 8\n.type {name},@function\n{name}:")
    a("s_cmp_ge_u32 s2, 256")
    a(f"s_cbranch_scc1 {name}_end")
    a(f"s_load_dwordx2 s[{sWS}:{sWS+1}], s[0:1], 80")
    rg = Regs(1, 168)
    vL = rg.alloc('vL'); T = [rg.alloc(f't{i}') for i in range(6)]
    base_n = rg.n
    a(f"v_lshrrev_b32 {vr(T[0])}, 6, v0")
    a(f"v_and_b32 {vr(vL)}, 63, v0")
    a(f"v_readfirstlane_b32 s{sWAVE}, {vr(T[0])}")
    a(f"s_and_b32 s{sXCD}, s2, 7")
    a(f"s_lshr_b32 s{sSLOT}, s2, 3")
    a(f"s_lshr_b32 s{sT0}, s{sSLOT}, 3")
    a(f"s_lshl_b32 s{sHEAD}, s{sXCD}, 2")
    a(f"s_add_u32 s{sHEAD}, s{sHEAD}, s{sT0}")
    a(f"s_and_b32 s{sQB}, s{sSLOT}, 7")
    a(f"s_mul_i32 s{sKB}, s{sHEAD}, 81920")
    a(f"s_mul_i32 s{sVB}, s{sHEAD}, 86016")
    a(f"s_add_u32 s{sVB}, s{sVB}, {VF}")
    v16 = rg.alloc('v16')
    a(f"v_lshlrev_b32 {vr(v16)}, 4, {vr(vL)}")
    a(f"s_cmp_ge_u32 s{sWAVE}, 8")
    a(f"s_cbranch_scc1 {name}_help")

    vB8 = rg.alloc('vB8')
    aK = [rg.alloc('aK0'), rg.alloc('aK1')]; aKb = [rg.alloc('aKb0'), rg.alloc('aKb1')]; aV = [rg.alloc('aV0'), rg.alloc('aV1')]
    vVo = rg.alloc('vVo')
    Qa = [rg.alloc('Qa0', 4, 2), rg.alloc('Qa1', 4, 2)]; Qb = [rg.alloc('Qb0', 2, 2), rg.alloc('Qb1', 2, 2)]
    Ka = [rg.alloc('Ka0', 4, 2), rg.alloc('Ka1', 4, 2)]; Kb = [rg.alloc('Kb0', 2, 2), rg.alloc('Kb1', 2, 2)]
    Vf = [rg.alloc('V0', 8, 2), rg.alloc('V1', 8, 2)]
    P = [rg.alloc('P0', 8, 2), rg.alloc('P1', 8, 2)]
    Sx = [rg.alloc('S0', 16, 2), rg.alloc('S1', 16, 2)]
    O = [rg.alloc('O0', 16, 2), rg.alloc('O1', 16, 2)]
    nv_att = rg.n
    a(f"s_and_b32 s{sQG}, s{sWAVE}, 3")
    a(f"s_lshr_b32 s{sKH}, s{sWAVE}, 2")
    a(f"v_and_b32 {vr(T[0])}, 31, {vr(vL)}")
    a(f"v_lshrrev_b32 {vr(T[1])}, 5, {vr(vL)}")
    a(f"v_lshlrev_b32 {vr(T[2])}, 2, {vr(T[1])}")
    a(f"v_lshl_add_u32 {vr(vB8)}, {vr(T[0])}, 3, {vr(T[2])}")
    a(f"s_lshl_b32 s{sT0}, s{sQB}, 2")
    a(f"s_add_u32 s{sT0}, s{sT0}, s{sQG}")
    a(f"s_mul_i32 s{sT0}, s{sT0}, 2560")
    a(f"s_add_u32 s{sT0}, s{sT0}, s{sKB}")
    assert QF == 0
    a(f"s_add_u32 s{sKB}, s{sKB}, {KF}")
    a("s_waitcnt lgkmcnt(0)")
    srd(a, dWS, sWS, WS_SIZE)
    a.vmem(f"buffer_load_dwordx4 {vr(Ka[0],4)}, {vr(v16)}, {sr(dWS,4)}, s{sKB} offen", 'q')
    a.vmem(f"buffer_load_dword {vr(Kb[0])}, {vr(vB8)}, {sr(dWS,4)}, s{sKB} offen offset:1024", 'q')
    for q in range(2):
        a.vmem(f"buffer_load_dwordx4 {vr(Qa[q],4)}, {vr(v16)}, {sr(dWS,4)}, s{sT0} offen offset:{1280*q}", 'q')
        a.vmem(f"buffer_load_dword {vr(Qb[q])}, {vr(vB8)}, {sr(dWS,4)}, s{sT0} offen offset:{1280*q+1024}", 'q')
    a(f"v_cmp_eq_u32 vcc, 0, {vr(T[1])}")
    a(f"v_mov_b32 {vr(T[2])}, 0x3f80")
    a(f"v_mov_b32 {vr(T[3])}, 0x3f803f80")
    a(f"v_cndmask_b32 {vr(Kb[0]+1)}, {vr(T[2])}, {vr(T[3])}, vcc")
    a(f"v_mov_b32 {vr(Kb[1]+1)}, {vr(Kb[0]+1)}")
    a(f"v_mov_b32 {vr(Qb[0]+1)}, 0")
    a(f"v_mov_b32 {vr(Qb[1]+1)}, 0")
    a(f"s_mul_i32 s{sT1}, s{sKH}, {8*1280}")
    a(f"v_add_u32 {vr(aK[0])}, s{sT1}, {vr(v16)}")
    a(f"v_add_u32 {vr(aKb[0])}, s{sT1}, {vr(vB8)}")
    a(f"v_add_u32 {vr(aKb[0])}, 1024, {vr(aKb[0])}")
    a(f"v_min_u32 {vr(T[2])}, 20, {vr(T[0])}")
    a(f"v_cmp_lt_u32 vcc, 27, {vr(T[0])}")
    a(f"v_mul_u32_u24 {vr(T[3])}, 21, {vr(T[1])}")
    a("s_nop 0")
    a(f"v_cndmask_b32 {vr(T[2])}, {vr(T[2])}, 4, vcc")
    a(f"v_add_lshl_u32 {vr(vVo)}, {vr(T[2])}, {vr(T[3])}, 4")
    a(f"s_mul_i32 s{sT1}, s{sKH}, {8*1344}")
    a(f"s_add_u32 s{sT1}, s{sT1}, {KV_K}")
    a(f"v_add_u32 {vr(aV[0])}, s{sT1}, {vr(vVo)}")
    for r in (aK, aKb, aV):
        a(f"v_add_u32 {vr(r[1])}, {SLOT[1]}, {vr(r[0])}")

    def qk(q, kbuf):
        return [f"v_mfma_f32_32x32x16_bf16 {vr(Sx[q],16)}, {vr(Ka[kbuf],4)}, {vr(Qa[q],4)}, 0",
                f"v_mfma_f32_32x32x8_bf16 {vr(Sx[q],16)}, {vr(Kb[kbuf],2)}, {vr(Qb[q],2)}, {vr(Sx[q],16)}"]
    def pv(q, vbuf, first):
        return [f"v_mfma_f32_32x32x16_bf16 {vr(O[q],16)}, {vr(Vf[vbuf],4)}, {vr(P[q],4)}, {'0' if first else vr(O[q],16)}",
                f"v_mfma_f32_32x32x16_bf16 {vr(O[q],16)}, {vr(Vf[vbuf]+4,4)}, {vr(P[q]+4,4)}, {vr(O[q],16)}"]
    def max16(src, dst, init=None):
        a(f"v_max3_f32 {vr(dst)}, {vr(src)}, {vr(src+1)}, {vr(src+2 if init is None else init)}")
        i = 3 if init is None else 2
        while i < 16:
            if i + 1 < 16:
                a(f"v_max3_f32 {vr(dst)}, {vr(dst)}, {vr(src+i)}, {vr(src+i+1)}"); i += 2
            else:
                a(f"v_max_f32 {vr(dst)}, {vr(dst)}, {vr(src+i)}"); i += 1
    def set_shift(m, q):
        t0, t1, t2 = T[3], T[4], T[5]
        a(f"v_mov_b32 {vr(t0)}, {vr(m)}")
        a("s_nop 1")
        a(f"v_permlane32_swap_b32 {vr(m)}, {vr(t0)}")
        a(f"v_max_f32 {vr(m)}, {vr(m)}, {vr(t0)}")
        a(f"v_sub_f32 {vr(m)}, 0, {vr(m)}")
        a(f"v_and_b32 {vr(t0)}, 0xffff0000, {vr(m)}")
        a(f"v_sub_f32 {vr(m)}, {vr(m)}, {vr(t0)}")
        a(f"v_and_b32 {vr(t1)}, 0xffff0000, {vr(m)}")
        a(f"v_sub_f32 {vr(m)}, {vr(m)}, {vr(t1)}")
        a(f"v_lshrrev_b32 {vr(t0)}, 16, {vr(t0)}")
        a(f"v_or_b32 {vr(t0)}, {vr(t0)}, {vr(t1)}")
        a(f"v_lshrrev_b32 {vr(m)}, 16, {vr(m)}")
        a(f"v_cmp_gt_u32 vcc, 32, {vr(vL)}")
        a("s_nop 1")
        a(f"v_cndmask_b32 {vr(Qb[q]+1)}, {vr(m)}, {vr(t0)}, vcc")
    a.wait(vm='all')
    for q in range(2):
        for m in qk(q, 0): a(m)
    a.nop(10)
    max16(Sx[0], T[1]); max16(Sx[1], T[2])
    set_shift(T[1], 0); set_shift(T[2], 1)

    def kread(t):
        c, i = t >> 3, t & 7
        s1 = 1 if c == 1 else 0
        off = (0 if s1 else SLOT[c]) + i*1280
        return [f"ds_read_b128 {vr(Ka[t&1],4)}, {vr(aK[s1])} offset:{off}",
                f"ds_read_b32 {vr(Kb[t&1])}, {vr(aKb[s1])} offset:{off}"]
    def vread(t):
        c, i = t >> 3, t & 7
        s1 = 1 if c == 1 else 0
        off = (0 if s1 else SLOT[c]) + i*1344
        return [f"ds_read_b128 {vr(Vf[t&1]+4*p,4)}, {vr(aV[s1])} offset:{off + 672*p}" for p in range(2)]
    def valu(q):
        L = []
        for i in range(8):
            L.append(f"v_exp_f32 {vr(Sx[q]+2*i)}, {vr(Sx[q]+2*i)}")
            L.append(f"v_exp_f32 {vr(Sx[q]+2*i+1)}, {vr(Sx[q]+2*i+1)}")
            if i: L.append(f"v_cvt_pk_bf16_f32 {vr(P[q]+i-1)}, {vr(Sx[q]+2*i-2)}, {vr(Sx[q]+2*i-1)}")
        L.append(f"v_cvt_pk_bf16_f32 {vr(P[q]+7)}, {vr(Sx[q]+14)}, {vr(Sx[q]+15)}")
        return L
    def phase(q, M, Rd):
        V = valu(q)
        cuts = [0, 5, 11, 17, 24]
        M = list(M) + [None]*(4 - len(M))
        Rd = list(Rd)
        for k in range(4):
            if M[k]: a(M[k])
            if k < 2:
                for r in Rd[2*k:2*k+2]: a.lds(r, 'f')
            for v in V[cuts[k]:cuts[k+1]]: a(v)

    a("s_barrier")
    for r in kread(0): a.lds(r, 'f')
    a.wait(lg='all')
    for m in qk(0, 0): a(m)
    a.nop(10)
    NT = 32
    for t in range(NT):
        if t in (7, 15, 23, 27):
            a("s_barrier")
        M = qk(1, t & 1) + (pv(1, (t-1) & 1, t == 1) if t else [])
        Rd = (kread(t+1) if t + 1 < NT else []) + vread(t)
        phase(0, M, Rd)
        a.wait(lg='all')
        M = (qk(0, (t+1) & 1) if t + 1 < NT else []) + pv(0, t & 1, t == 0)
        phase(1, M, [])
    a("s_nop 0")
    for m in pv(1, (NT-1) & 1, False): a(m)
    a(f"s_lshl_b32 s{sT0}, s{sQG}, 1")
    a(f"s_add_u32 s{sT1}, s{sT0}, s{sKH}")
    a(f"s_xor_b32 s{sT2}, s{sT1}, 1")
    a(f"s_mul_i32 s{sT2}, s{sT2}, 3072")
    a(f"s_add_u32 s{sT2}, s{sT2}, {XCH}")
    a(f"v_add_u32 {vr(T[0])}, s{sT2}, {vr(v16)}")
    a(f"s_mul_i32 s{sT2}, s{sT1}, 3072")
    a(f"s_add_u32 s{sT2}, s{sT2}, {XCH}")
    a(f"v_add_u32 {vr(T[1])}, s{sT2}, {vr(v16)}")
    a(f"s_lshl_b32 s{sT0}, s{sQB}, 3")
    a(f"s_add_u32 s{sT0}, s{sT0}, s{sT1}")
    a(f"s_lshl_b32 s{sT0}, s{sT0}, 5")
    a(f"s_add_u32 s{sT0}, s{sT0}, s{sHEAD}")
    a(f"s_mul_i32 s{sOB}, s{sT0}, 1280")
    a(f"s_add_u32 s{sOB}, s{sOB}, {OF}")
    a(f"s_cmp_eq_u32 s{sKH}, 0")
    a(f"s_cbranch_scc1 {name}_noswap")
    for i in range(12): a(f"v_swap_b32 {vr(O[0]+i)}, {vr(O[1]+i)}")
    for i in range(4): a(f"v_mov_b32 {vr(Qa[0]+i)}, {vr(Qa[1]+i)}")
    a(f"v_mov_b32 {vr(Qb[0])}, {vr(Qb[1])}")
    a.label(f"{name}_noswap")
    for i in range(3): a(f"ds_write_b128 {vr(T[0])}, {vr(O[1]+4*i,4)} offset:{1024*i}")
    a("s_waitcnt lgkmcnt(0)")
    a("s_barrier")
    for i in range(3): a(f"ds_read_b128 {vr(O[1]+4*i,4)}, {vr(T[1])} offset:{1024*i}")
    a(f"v_lshlrev_b32 {vr(T[2])}, 3, {vr(vL)}")
    a(f"v_cmp_gt_u32 vcc, 32, {vr(vL)}")
    a(f"v_mov_b32 {vr(T[3])}, {OOB}")
    a("s_nop 0")
    a(f"v_cndmask_b32 {vr(vB8 if False else T[2])}, {vr(T[3])}, {vr(T[2])}, vcc")
    a("s_waitcnt lgkmcnt(0)")
    for i in range(0, 12, 2):
        a(f"v_pk_add_f32 {vr(O[0]+i,2)}, {vr(O[0]+i,2)}, {vr(O[1]+i,2)}")
    def finish(check):
        l0, l1 = T[3], T[4]
        a(f"v_mov_b32 {vr(l0)}, {vr(O[0]+8)}")
        a(f"v_mov_b32 {vr(l1)}, {vr(O[0]+8)}")
        a("s_nop 1")
        a(f"v_permlane32_swap_b32 {vr(l0)}, {vr(l1)}")
        a(f"v_rcp_f32 {vr(l0)}, {vr(l1)}")
        if check:
            a(f"v_and_b32 {vr(T[5])}, 0x7fffffff, {vr(O[0])}")
            for i in range(1, 8):
                a(f"v_and_b32 {vr(T[0])}, 0x7fffffff, {vr(O[0]+i)}")
                a(f"v_max_u32 {vr(T[5])}, {vr(T[5])}, {vr(T[0])}")
            for i in range(8, 12):
                a(f"v_and_b32 {vr(T[0])}, 0x7fffffff, {vr(O[0]+i)}")
                a(f"v_cndmask_b32 {vr(T[0])}, 0, {vr(T[0])}, vcc")
                a(f"v_max_u32 {vr(T[5])}, {vr(T[5])}, {vr(T[0])}")
            a(f"v_cmp_le_u32 s[34:35], 0x7f800000, {vr(T[5])}" if False else f"v_mov_b32 {vr(T[0])}, 0x7f800000")
            a(f"v_cmp_ge_u32 s[34:35], {vr(T[5])}, {vr(T[0])}")
            a(f"v_mov_b32 {vr(T[0])}, {f2u(2.0**100):#x}")
            a(f"v_cmp_nlt_f32 s[36:37], {vr(l1)}, {vr(T[0])}")
            a("s_nop 1")
            a("s_or_b64 s[34:35], s[34:35], s[36:37]")
            a(f"s_cbranch_scc1 {name}_slow")
        else:
            a("s_nop 0")
        for i in range(12):
            a(f"v_mul_f32 {vr(O[0]+i)}, {vr(O[0]+i)}, {vr(l0)}")
        for i in range(6):
            a(f"v_cvt_pk_bf16_f32 {vr(P[0]+i)}, {vr(O[0]+2*i)}, {vr(O[0]+2*i+1)}")
        a(f"buffer_store_dwordx4 {vr(P[0],4)}, {vr(v16)}, {sr(dWS,4)}, s{sOB} offen{st}")
        a(f"buffer_store_dwordx2 {vr(P[0]+4,2)}, {vr(T[2])}, {sr(dWS,4)}, s{sOB} offen offset:1024{st}")
        a("s_endpgm")
    finish(True)

    a.label(f"{name}_slow")
    a(f"v_mov_b32 {vr(Qb[0]+1)}, 0")
    a(f"v_mov_b32 {vr(T[1])}, 0xff800000")
    a(f"s_mov_b32 s{sI}, s{sKB}")
    a(f"s_add_u32 s{sT3}, s{sKB}, 81920")
    a.label(f"{name}_slow1")
    a(f"buffer_load_dwordx4 {vr(Ka[0],4)}, {vr(v16)}, {sr(dWS,4)}, s{sI} offen")
    a(f"buffer_load_dword {vr(Kb[0])}, {vr(vB8)}, {sr(dWS,4)}, s{sI} offen offset:1024")
    a("s_waitcnt vmcnt(0)")
    for m in qk(0, 0): a(m)
    a.nop(12)
    max16(Sx[0], T[1], T[1])
    a(f"s_add_u32 s{sI}, s{sI}, 1280")
    a(f"s_cmp_lt_u32 s{sI}, s{sT3}")
    a(f"s_cbranch_scc1 {name}_slow1")
    set_shift(T[1], 0)
    for i in range(16): a(f"v_mov_b32 {vr(O[0]+i)}, 0")
    a(f"s_mov_b32 s{sI}, s{sKB}")
    a(f"s_mov_b32 s{sT0}, s{sVB}")
    a.label(f"{name}_slow2")
    a(f"buffer_load_dwordx4 {vr(Ka[0],4)}, {vr(v16)}, {sr(dWS,4)}, s{sI} offen")
    a(f"buffer_load_dword {vr(Kb[0])}, {vr(vB8)}, {sr(dWS,4)}, s{sI} offen offset:1024")
    a(f"buffer_load_dwordx4 {vr(Vf[0],4)}, {vr(vVo)}, {sr(dWS,4)}, s{sT0} offen")
    a(f"buffer_load_dwordx4 {vr(Vf[0]+4,4)}, {vr(vVo)}, {sr(dWS,4)}, s{sT0} offen offset:672")
    a("s_waitcnt vmcnt(0)")
    for m in qk(0, 0): a(m)
    a.nop(12)
    for v in valu(0): a(v)
    a.nop(2)
    for m in pv(0, 0, False): a(m)
    a(f"s_add_u32 s{sI}, s{sI}, 1280")
    a(f"s_add_u32 s{sT0}, s{sT0}, 1344")
    a(f"s_cmp_lt_u32 s{sI}, s{sT3}")
    a(f"s_cbranch_scc1 {name}_slow2")
    a.nop(12)
    finish(False)

    a.label(f"{name}_help")
    a.vm = []; a.lg = []
    rg.n = base_n + 1
    aH = rg.alloc('aH'); aWd = rg.alloc('aWd', 5)
    FR = [rg.alloc(f'fr{i}', 24, 2) for i in range(3)]
    ACC = rg.alloc('acc', 80, 2)
    nv = max(nv_att, rg.n)
    a(f"s_sub_u32 s{sHW}, s{sWAVE}, 8")
    a(f"s_add_u32 s{sKB}, s{sKB}, {KF}")
    a(f"s_mul_i32 s{sL5}, s{sHW}, 5120")
    a(f"s_add_u32 s{sKB}, s{sKB}, s{sL5}")
    a(f"s_add_u32 s{sT3}, s{sVB}, s{sL5}")
    a("s_waitcnt lgkmcnt(0)")
    srd(a, dWS, sWS, WS_SIZE)
    def dma(src, srcoff, lds_s, ldsoff, n, tag):
        if lds_s is None: a(f"s_mov_b32 m0, {ldsoff}")
        else: a(f"s_add_u32 m0, s{lds_s}, {ldsoff}")
        a(f"s_add_u32 s{sT0}, s{src}, {srcoff}")
        for j in range(n):
            a.vmem(f"buffer_load_dwordx4 {vr(v16)}, {sr(dWS,4)}, s{sT0} offen offset:{1024*j} lds", tag)
    def chunk(c):
        tag = ('c', c)
        dma(sKB, c*KV_K, sL5, SLOT[c], 4, tag)
        dma(sKB, c*KV_K + 4096, sL5, SLOT[c] + 4096, 1, tag)
        dma(sT3, c*KV_V, sL5, SLOT[c] + KV_K, 4, tag)
        dma(sT3, c*KV_V + 4096, sL5, SLOT[c] + KV_K + 4096, 1, tag)
        dma(sVB, c*KV_V + 20480, None, SLOT[c] + KV_K + 20480, 1, tag)
    chunk(0); chunk(1)
    a(f"s_lshr_b32 s{sTB}, s{sXCD}, 1")
    a(f"s_lshl_b32 s{sTB}, s{sTB}, 4")
    a(f"s_lshr_b32 s{sT0}, s{sSLOT}, 1")
    a(f"s_add_u32 s{sTB}, s{sTB}, s{sT0}")
    a(f"s_and_b32 s{sCG}, s{sXCD}, 1")
    a(f"s_lshl_b32 s{sCG}, s{sCG}, 1")
    a(f"s_and_b32 s{sT0}, s{sSLOT}, 1")
    a(f"s_add_u32 s{sCG}, s{sCG}, s{sT0}")
    a(f"s_mul_i32 s{sT0}, s{sTB}, {108*1024}")
    a(f"s_add_u32 s{sT0}, s{sT0}, {HF}")
    a(f"v_add_u32 {vr(aH)}, s{sT0}, {vr(v16)}")
    a(f"s_mul_i32 s{sT0}, s{sCG}, {5*110592}")
    a(f"s_add_u32 s{sT0}, s{sT0}, {WDF}")
    for i in range(5):
        a(f"v_add_u32 {vr(aWd+i)}, s{sT0}, {vr(v16)}")
        if i < 4: a(f"s_add_u32 s{sT0}, s{sT0}, 110592")
    a(f"s_mul_i32 s{sKO}, s{sHW}, {27*1024}")
    def dload(k):
        f = FR[k % 3]
        if k and k % 4 == 0: a(f"s_add_u32 s{sKO}, s{sKO}, 4096")
        o = 1024*(k % 4)
        a.vmem(f"buffer_load_dwordx4 {vr(f,4)}, {vr(aH)}, {sr(dWS,4)}, s{sKO} offen offset:{o}", ('d', k))
        for i in range(5):
            a.vmem(f"buffer_load_dwordx4 {vr(f+4+4*i,4)}, {vr(aWd+i)}, {sr(dWS,4)}, s{sKO} offen offset:{o}", ('d', k))
    def dstep(k):
        a.wait(vm=('d', k))
        f = FR[k % 3]
        for i in range(5):
            a(f"v_mfma_f32_32x32x16_bf16 {vr(ACC+16*i,16)}, {vr(f+4+4*i,4)}, {vr(f,4)}, {'0' if k == 0 else vr(ACC+16*i,16)}")
        if k + 3 < 27: dload(k + 3)
    chunk(2)
    a.wait(vm=('c', 0))
    a("s_barrier")
    if helper:
        dload(0); dload(1); dload(2)
        for k in range(0, 9): dstep(k)
    a.wait(vm=('c', 1))
    a("s_barrier")
    if helper:
        for k in range(9, 18): dstep(k)
    a.wait(vm=('c', 2))
    a("s_barrier")
    chunk(3)
    if helper:
        for k in range(18, 27): dstep(k)
    a.wait(vm='all')
    a.nop(10)
    a("s_barrier")
    if helper:
        for own in range(4):
            a(f"s_cmp_eq_u32 s{sHW}, {own}")
            a(f"s_cbranch_scc1 {name}_skip{own}")
            a(f"s_sub_u32 s{sT0}, s{sHW}, {own + 1}")
            a(f"s_and_b32 s{sT0}, s{sT0}, 3")
            a(f"s_mul_i32 s{sT0}, s{sT0}, 5120")
            a(f"s_add_u32 s{sT0}, s{sT0}, {RED + own*15360}")
            a(f"v_add_u32 {vr(T[0])}, s{sT0}, {vr(v16)}")
            for t in range(5):
                a(f"ds_write_b128 {vr(T[0])}, {vr(ACC+16*t+4*own,4)} offset:{1024*t}")
            a(f"s_branch {name}_next{own}")
            a.label(f"{name}_skip{own}")
            for t in range(5):
                for i in range(4):
                    a(f"v_mov_b32 {vr(FR[0]+4*t+i)}, {vr(ACC+16*t+4*own+i)}")
            a.label(f"{name}_next{own}")
        a("s_waitcnt lgkmcnt(0)")
    a("s_barrier")
    if helper:
        a(f"s_mul_i32 s{sT0}, s{sHW}, 15360")
        a(f"s_add_u32 s{sT0}, s{sT0}, {RED}")
        a(f"v_add_u32 {vr(T[0])}, s{sT0}, {vr(v16)}")
        for snd in range(3):
            for t in range(5):
                a(f"ds_read_b128 {vr(ACC+20*snd+4*t,4)}, {vr(T[0])} offset:{5120*snd + 1024*t}")
        a(f"s_lshl_b32 s{sT0}, s{sTB}, 2")
        a(f"s_add_u32 s{sT0}, s{sT0}, s{sCG}")
        a(f"s_mul_i32 s{sT0}, s{sT0}, 10240")
        a(f"s_lshl_b32 s{sT1}, s{sHW}, 9")
        a(f"s_add_u32 s{sT0}, s{sT0}, s{sT1}")
        a(f"s_add_u32 s{sT0}, s{sT0}, {BF}")
        a(f"v_lshlrev_b32 {vr(T[1])}, 3, {vr(vL)}")
        a("s_waitcnt lgkmcnt(0)")
        for snd in range(3):
            for i in range(0, 20, 2):
                a(f"v_pk_add_f32 {vr(FR[0]+i,2)}, {vr(FR[0]+i,2)}, {vr(ACC+20*snd+i,2)}")
        for t in range(5):
            a(f"v_cvt_pk_bf16_f32 {vr(FR[1]+2*t)}, {vr(FR[0]+4*t)}, {vr(FR[0]+4*t+1)}")
            a(f"v_cvt_pk_bf16_f32 {vr(FR[1]+2*t+1)}, {vr(FR[0]+4*t+2)}, {vr(FR[0]+4*t+3)}")
            if t == 2: a(f"s_add_u32 s{sT0}, s{sT0}, 4096")
            if t == 4: a(f"s_add_u32 s{sT0}, s{sT0}, 4096")
            a(f"buffer_store_dwordx2 {vr(FR[1]+2*t,2)}, {vr(T[1])}, {sr(dWS,4)}, s{sT0} offen offset:{2048*(t & 1)}{st}")
    a("s_barrier")
    a.label(f"{name}_end")
    a("s_endpgm")
    return a.text(), kd(name, nv), K2_LDS
```

```python
from asmlib import *
from common import *
K3_LDS = 40960
sWS, sOUT = 4, 6
dWS, dO = 8, 12
sXCD, sSLOT, sWAVE, sTB, sCG, sT0, sT1, sNT = 16, 17, 18, 19, 20, 21, 22, 23

def emit_k3(name, st=""):
    a = Asm()
    a.raw(f".globl {name}\n.p2align 8\n.type {name},@function\n{name}:")
    a("s_cmp_ge_u32 s2, 256")
    a(f"s_cbranch_scc1 {name}_end")
    a(f"s_load_dwordx2 s[{sWS}:{sWS+1}], s[0:1], 80")
    a(f"s_load_dwordx2 s[{sOUT}:{sOUT+1}], s[0:1], 64")
    rg = Regs(1, 256)
    vL = rg.alloc('vL'); T = [rg.alloc(f't{i}') for i in range(6)]
    v16 = rg.alloc('v16'); vG = rg.alloc('g'); aR = rg.alloc('aR')
    Bq = rg.alloc('b', 8, 2)
    OFR = [rg.alloc(f'of{i}', 4, 2) for i in range(4)]
    ACC = rg.alloc('acc', 16, 2)
    W = rg.alloc('w', 160, 2)
    nv = rg.n
    a(f"v_lshrrev_b32 {vr(T[0])}, 6, v0")
    a(f"v_and_b32 {vr(vL)}, 63, v0")
    a(f"v_readfirstlane_b32 s{sWAVE}, {vr(T[0])}")
    a(f"s_and_b32 s{sXCD}, s2, 7")
    a(f"s_lshr_b32 s{sSLOT}, s2, 3")
    a(f"s_lshr_b32 s{sTB}, s{sXCD}, 1")
    a(f"s_lshl_b32 s{sTB}, s{sTB}, 4")
    a(f"s_lshr_b32 s{sT0}, s{sSLOT}, 1")
    a(f"s_add_u32 s{sTB}, s{sTB}, s{sT0}")
    a(f"s_and_b32 s{sCG}, s{sXCD}, 1")
    a(f"s_lshl_b32 s{sCG}, s{sCG}, 1")
    a(f"s_and_b32 s{sT0}, s{sSLOT}, 1")
    a(f"s_add_u32 s{sCG}, s{sCG}, s{sT0}")
    a(f"v_lshlrev_b32 {vr(v16)}, 4, {vr(vL)}")
    a(f"s_mul_i32 s{sNT}, s{sCG}, 5")
    a(f"s_add_u32 s{sNT}, s{sNT}, s{sWAVE}")
    a(f"s_mul_i32 s{sT0}, s{sTB}, 40960")
    a(f"s_lshl_b32 s{sT1}, s{sWAVE}, 13")
    a(f"s_add_u32 s{sT0}, s{sT0}, s{sT1}")
    a(f"s_add_u32 s{sT0}, s{sT0}, {OF}")
    a(f"s_mov_b32 m0, s{sT1}")
    a("s_waitcnt lgkmcnt(0)")
    srd(a, dWS, sWS, WS_SIZE)
    for g in range(2):
        if g:
            a(f"s_add_u32 m0, s{sT1}, 4096")
            a(f"s_add_u32 s{sT0}, s{sT0}, 4096")
        for j in range(4):
            a.vmem(f"buffer_load_dwordx4 {vr(v16)}, {sr(dWS,4)}, s{sT0} offen offset:{1024*j} lds", 'o')
    a(f"s_mul_i32 s{sT0}, s{sNT}, 40960")
    a(f"s_add_u32 s{sT0}, s{sT0}, {WOF}")
    for k in range(40):
        if k and k % 4 == 0: a(f"s_add_u32 s{sT0}, s{sT0}, 4096")
        a.vmem(f"buffer_load_dwordx4 {vr(W+4*k,4)}, {vr(v16)}, {sr(dWS,4)}, s{sT0} offen offset:{1024*(k % 4)}", ('w', k))
    a(f"s_lshl_b32 s{sT0}, s{sTB}, 2")
    a(f"s_add_u32 s{sT0}, s{sT0}, s{sCG}")
    a(f"s_mul_i32 s{sT0}, s{sT0}, 10240")
    a(f"s_lshl_b32 s{sT1}, s{sWAVE}, 11")
    a(f"s_add_u32 s{sT0}, s{sT0}, s{sT1}")
    a(f"s_add_u32 s{sT0}, s{sT0}, {BF}")
    a(f"v_lshlrev_b32 {vr(T[1])}, 3, {vr(vL)}")
    for q in range(4):
        a.vmem(f"buffer_load_dwordx2 {vr(Bq+2*q,2)}, {vr(T[1])}, {sr(dWS,4)}, s{sT0} offen offset:{512*q}", 'b')
    a(f"v_and_b32 {vr(T[2])}, 31, {vr(vL)}")
    a(f"v_lshlrev_b32 {vr(T[3])}, 2, {vr(T[2])}")
    a(f"s_lshl_b32 s{sT0}, s{sTB}, 7")
    a(f"s_add_u32 s{sT0}, s{sT0}, {GG}")
    a.vmem(f"buffer_load_dword {vr(vG)}, {vr(T[3])}, {sr(dWS,4)}, s{sT0} offen", 'b')
    srd(a, dO, sOUT, S*D*2)
    a(f"v_lshrrev_b32 {vr(T[4])}, 5, {vr(vL)}")
    a(f"v_mul_u32_u24 {vr(aR)}, 1280, {vr(T[4])}")
    a(f"v_lshl_add_u32 {vr(aR)}, {vr(T[2])}, 3, {vr(aR)}")
    a(f"v_mul_u32_u24 {vr(T[5])}, 1280, {vr(T[2])}")
    a(f"v_lshl_add_u32 {vr(T[5])}, {vr(T[4])}, 4, {vr(T[5])}")
    a(f"s_mul_i32 s{sT0}, s{sTB}, {32*1280}")
    a(f"s_lshl_b32 s{sT1}, s{sNT}, 6")
    a(f"s_add_u32 s{sT1}, s{sT0}, s{sT1}")
    a.wait(vm='o')
    a("s_barrier")
    def oread(k):
        f = OFR[k % 4]
        if k < 32:
            a.lds(f"ds_read_b128 {vr(f,4)}, {vr(v16)} offset:{k*1280}", k)
        else:
            g = k - 32
            a.lds(f"ds_read_b64 {vr(f,2)}, {vr(aR)} offset:{(4*g)*1280 + 1024}", k)
            a.lds(f"ds_read_b64 {vr(f+2,2)}, {vr(aR)} offset:{(4*g+2)*1280 + 1024}", k)
    for k in range(3): oread(k)
    for k in range(40):
        a.wait(vm=('w', k), lg=k)
        a(f"v_mfma_f32_32x32x16_bf16 {vr(ACC,16)}, {vr(W+4*k,4)}, {vr(OFR[k % 4],4)}, {'0' if k == 0 else vr(ACC,16)}")
        if k + 3 < 40: oread(k + 3)
    a.wait(vm='all')
    for i in range(8):
        a(f"v_lshlrev_b32 {vr(W+2*i)}, 16, {vr(Bq+i)}")
        a(f"v_and_b32 {vr(W+2*i+1)}, 0xffff0000, {vr(Bq+i)}")
    for i in range(16):
        a(f"v_sub_f32 {vr(ACC+i)}, {vr(ACC+i)}, {vr(W+i)}")
        a(f"v_fma_f32 {vr(ACC+i)}, {vr(ACC+i)}, {vr(vG)}, {vr(W+i)}")
    for i in range(8):
        a(f"v_cvt_pk_bf16_f32 {vr(Bq+i)}, {vr(ACC+2*i)}, {vr(ACC+2*i+1)}")
    a("s_nop 1")
    for p in range(2):
        a(f"v_permlane32_swap_b32 {vr(Bq+4*p)}, {vr(Bq+4*p+2)}")
        a(f"v_permlane32_swap_b32 {vr(Bq+4*p+1)}, {vr(Bq+4*p+3)}")
    for p in range(2):
        a(f"buffer_store_dwordx4 {vr(Bq+4*p,4)}, {vr(T[5])}, {sr(dO,4)}, s{sT1} offen offset:{32*p}{st}")
    a.label(f"{name}_end")
    a("s_endpgm")
    return a.text(), kd(name, nv), K3_LDS
```

```python
import sys
import build, k1, k2, k3
def parts(st1="", st2="", st3="", **kw):
    return [("proj_kernel", 256, 512, k1.emit_k1("proj_kernel", st1)),
            ("attn_kernel", 256, 768, k2.emit_k2("attn_kernel", st2, **kw)),
            ("outp_kernel", 256, 320, k3.emit_k3("outp_kernel", st3))]
if __name__ == "__main__":
    build.build(parts(), "gated_mix__softmax_full_mha__glu_gated_glu__prompt.s")
```

```python
import build, mk
from asmlib import kd
p = mk.parts()
empty = ("nop_kernel", 256, 64, (".globl nop_kernel\n.p2align 8\n.type nop_kernel,@function\nnop_kernel:\n    s_endpgm\n", kd("nop_kernel", 8), 0))
build.build(p + [empty, empty], "vB.s")
build.build(p + [p[2]], "vC.s")
build.build([p[0]] + p, "vD.s")
build.build([p[0], p[1], p[1], p[2]], "vE.s")
build.build(p, "vA.s")
```

```python
from asmlib import *
from common import *

WRING = 0
XRING = 98304
K1_LDS = XRING + 3*16384
NSTEP = 20

sXP, sWQ, sWO, sBX, sWG, sWU, sWD, sGW = 4, 6, 8, 10, 12, 14, 16, 18
sWS = 20
dX, dW, dWS = 24, 28, 32
sXCD, sSLOT, sWAVE, sCOL, sRB, sT0, sT1, sT2, sT3 = 36, 37, 38, 39, 40, 41, 42, 43, 44
sXW, sWW, sWK = 45, 46, 47
sC0 = 48
sC1 = 50
sB0, sB1 = 52, 53

def gemm_main(a, kind, R):
    gu = kind == 'gu'
    NT = 2 if gu else 1
    NW = 3 if gu else 5
    pitchL = 384 if gu else 640
    pitchG = 3456 if gu else 3840
    acc, fx, fw = R['acc'], R['fx'], R['fw']
    vWo, vXo, aX, aW = R['vWo'], R['vXo'], R['aX'], R['aW']

    def dma_w(s):
        a(f"s_add_u32 m0, s{sWW}, {WRING + (s % 4)*24576}")
        a(f"s_mov_b32 s{sWK}, {s*32*pitchG}")
        for j in range(3):
            a.vmem(f"buffer_load_dwordx4 {vr(vWo+j)}, {sr(dW,4)}, s{sWK} offen offset:{1024*j} lds", ('w', s))
    def dma_x(b, j):
        a(f"s_add_u32 m0, s{sXW}, {XRING + (b % 3)*16384 + j*1024 - b*128}")
        a("s_nop 0")
        a.vmem(f"buffer_load_dwordx4 {vr(vXo+j)}, {sr(dX,4)}, 0 offen offset:{b*128} lds", ('x', b))
    def reads(s, e1):
        L = []
        b, e = s >> 1, 2*(s & 1) + e1
        for tt in range(NT):
            L.append(f"ds_read_b128 {vr(fx[e1]+4*tt,4)}, {vr(aX+e)} offset:{(b % 3)*16384 + tt*4096}")
        slot = s % 4
        for t in range(NW):
            for u in range(2):
                L.append(f"ds_read_b64_tr_b16 {vr(fw[e1]+4*t+2*u,2)}, {vr(aW + (slot >> 1)*NW + t)} "
                         f"offset:{(slot & 1)*24576 + (16*e1 + 4*u)*pitchL}")
        return L
    def mfmas(st, first):
        L = []
        order = [(tt, t) for t in range(NW) for tt in range(NT)]
        for tt, t in order:
            d = acc + 16*(tt*NW + t)
            A, B = vr(fw[st]+4*t, 4), vr(fx[st]+4*tt, 4)
            if kind == 'v': A, B = B, A
            L.append(f"v_mfma_f32_32x32x16_bf16 {vr(d,16)}, {A}, {B}, {'0' if first else vr(d,16)}")
        return L
    def block(M, Rd, pre=()):
        Rd = list(Rd); pre = list(pre)
        for i, m in enumerate(M):
            a(m)
            if i == 0:
                for f in pre: f()
            for _ in range(2):
                if Rd: a.lds(Rd.pop(0), 'f')
        for r in Rd: a.lds(r, 'f')

    dma_x(0, 0); dma_x(0, 1); dma_w(0); dma_w(1); dma_x(1, 0); dma_x(1, 1); dma_w(2)
    yield 'setup'
    for s in range(NSTEP):
        need = lambda t, s=s: (t[0] == 'w' and t[1] <= s) or (t[0] == 'x' and t[1] <= s >> 1)
        a.wait(vm=need, lg='all')
        a("s_barrier")
        if s == 0: a("; @mark 0")
        if s == 4: a("; @mark 1")
        if s == 10: a("; @mark 2")
        if s == 19: a("; @mark 3")
        pre = []
        if s + 3 < NSTEP: pre.append(lambda s=s: dma_w(s + 3))
        bx = (s + 4) >> 1
        if bx < NSTEP // 2: pre.append(lambda s=s, bx=bx: dma_x(bx, s & 1))
        if s == 0:
            for f in pre: f()
            for r in reads(0, 0): a.lds(r, 'f')
        else:
            block(mfmas(1, False), reads(s, 0), pre)
        a.wait(lg='all')
        block(mfmas(0, s == 0) if s else mfmas(0, True), reads(s, 1))
    a.wait(lg='all')
    for m in mfmas(1, False): a(m)
    a("; @mark 4")

def lane_bits(a, R):
    vL, vT = R['vL'], R['vT']
    a(f"v_and_b32 {vr(vL)}, 63, v0")

def emit_k1(name, st="", ):
    a = Asm()
    a.raw(f".globl {name}\n.p2align 8\n.type {name},@function\n{name}:")
    a("s_cmp_ge_u32 s2, 256")
    a(f"s_cbranch_scc1 {name}_end")
    a(f"s_load_dwordx16 s[4:19], s[0:1], 0")
    a(f"s_load_dwordx2 s[{sWS}:{sWS+1}], s[0:1], 80")
    rg = Regs(1, 256)
    R = {}
    vL = rg.alloc('vL'); R['vL'] = vL
    vT = rg.alloc('vT', 8); R['vT'] = vT
    R['vWo'] = rg.alloc('vWo', 3); R['vXo'] = rg.alloc('vXo', 2)
    R['aX'] = rg.alloc('aX', 4); R['aW'] = rg.alloc('aW', 10)
    R['fx'] = [rg.alloc('fx0', 8, 4), rg.alloc('fx1', 8, 4)]
    R['fw'] = [rg.alloc('fw0', 20, 4), rg.alloc('fw1', 20, 4)]
    R['acc'] = rg.alloc('acc', 96, 4)
    nv = rg.n
    vWo, vXo, aX, aW, acc = R['vWo'], R['vXo'], R['aX'], R['aW'], R['acc']
    T = [vT + i for i in range(8)]
    a(f"v_lshrrev_b32 {vr(T[0])}, 6, v0")
    a(f"v_and_b32 {vr(vL)}, 63, v0")
    a(f"v_readfirstlane_b32 s{sWAVE}, {vr(T[0])}")
    a(f"s_and_b32 s{sXCD}, s2, 7")
    a(f"s_lshr_b32 s{sSLOT}, s2, 3")
    a(f"s_cmp_ge_u32 s{sSLOT}, 30")
    a(f"s_cbranch_scc1 {name}_misc")
    a(f"s_and_b32 s{sT0}, s{sXCD}, 3")
    a(f"s_mul_i32 s{sT0}, s{sT0}, 30")
    a(f"s_add_u32 s{sT0}, s{sT0}, s{sSLOT}")
    a(f"s_lshr_b32 s{sCOL}, s{sT0}, 3")
    a(f"s_and_b32 s{sT0}, s{sT0}, 7")
    a(f"s_lshr_b32 s{sRB}, s{sXCD}, 2")
    a(f"s_lshl_b32 s{sRB}, s{sRB}, 3")
    a(f"s_add_u32 s{sRB}, s{sRB}, s{sT0}")
    a(f"s_lshl_b32 s{sXW}, s{sWAVE}, 11")
    a(f"s_mul_i32 s{sWW}, s{sWAVE}, 3072")
    a(f"s_lshl_b32 s{sT0}, s{sRB}, 7")
    a(f"s_lshl_b32 s{sT1}, s{sWAVE}, 4")
    a(f"s_add_u32 s{sT0}, s{sT0}, s{sT1}")
    a(f"s_mul_i32 s{sT0}, s{sT0}, 1280")
    a(f"v_lshrrev_b32 {vr(T[0])}, 3, {vr(vL)}")
    a(f"v_mul_u32_u24 {vr(T[0])}, 1280, {vr(T[0])}")
    a(f"v_add_u32 {vr(T[0])}, s{sT0}, {vr(T[0])}")
    a(f"v_lshrrev_b32 {vr(T[1])}, 4, {vr(vL)}")
    a(f"v_and_b32 {vr(T[2])}, 7, {vr(vL)}")
    a(f"v_xor_b32 {vr(T[1])}, {vr(T[1])}, {vr(T[2])}")
    a(f"v_lshl_add_u32 {vr(vXo)}, {vr(T[1])}, 4, {vr(T[0])}")
    a(f"v_xor_b32 {vr(T[1])}, 4, {vr(T[1])}")
    a(f"v_lshl_add_u32 {vr(vXo+1)}, {vr(T[1])}, 4, {vr(T[0])}")
    a(f"v_add_u32 {vr(vXo+1)}, {8*1280}, {vr(vXo+1)}")
    a(f"s_cmp_ge_u32 s{sCOL}, 6")
    a(f"s_cbranch_scc1 {name}_gu")

    def ds_x_addr(tokmul_shift, wm_s):
        a(f"v_and_b32 {vr(T[0])}, 31, {vr(vL)}")
        a(f"v_lshrrev_b32 {vr(T[1])}, 5, {vr(vL)}")
        a(f"v_bfe_u32 {vr(T[2])}, {vr(vL)}, 1, 3")
        a(f"v_xor_b32 {vr(T[1])}, {vr(T[1])}, {vr(T[2])}")
        a(f"s_lshl_b32 s{sT0}, s{wm_s}, {tokmul_shift + 7}")
        a(f"s_add_u32 s{sT0}, s{sT0}, {XRING}")
        a(f"v_lshl_add_u32 {vr(T[0])}, {vr(T[0])}, 7, s{sT0}")
        for e in range(4):
            a(f"v_xor_b32 {vr(T[2])}, {2*e}, {vr(T[1])}")
            a(f"v_lshl_add_u32 {vr(aX+e)}, {vr(T[2])}, 4, {vr(T[0])}")

    for j in range(3):
        a(f"s_mul_i32 s{sT0}, s{sWAVE}, 192")
        a(f"s_add_u32 s{sT0}, s{sT0}, {64*j}")
        a(f"v_add_u32 {vr(T[0])}, s{sT0}, {vr(vL)}")
        a(f"v_mul_u32_u24 {vr(T[1])}, 1639, {vr(T[0])}")
        a(f"v_lshrrev_b32 {vr(T[1])}, 16, {vr(T[1])}")
        a(f"v_mul_u32_u24 {vr(T[2])}, 40, {vr(T[1])}")
        a(f"v_sub_u32 {vr(T[2])}, {vr(T[0])}, {vr(T[2])}")
        a(f"v_bfe_u32 {vr(T[3])}, {vr(T[1])}, 1, 1")
        a(f"v_lshlrev_b32 {vr(T[3])}, 2, {vr(T[3])}")
        a(f"v_xor_b32 {vr(T[2])}, {vr(T[2])}, {vr(T[3])}")
        a(f"v_mul_u32_u24 {vr(T[1])}, 3840, {vr(T[1])}")
        a(f"v_lshl_add_u32 {vr(T[1])}, {vr(T[2])}, 4, {vr(T[1])}")
        a(f"s_mul_i32 s{sT0}, s{sCOL}, 640")
        a(f"s_sub_u32 s{sT0}, s{sT0}, {1024*j}")
        a(f"v_add_u32 {vr(T[1])}, s{sT0}, {vr(T[1])}")
        a(f"v_cmp_gt_u32 vcc, 1280, {vr(T[0])}")
        a(f"v_mov_b32 {vr(T[2])}, {OOB}")
        a("s_nop 0")
        a(f"v_cndmask_b32 {vr(vWo+j)}, {vr(T[2])}, {vr(T[1])}, vcc")
    a("s_waitcnt lgkmcnt(0)")
    srd(a, dX, sXP, S*D*2)
    srd(a, dW, sWQ, D*3*D*2)
    srd(a, dWS, sWS, WS_SIZE)
    a(f"s_cmp_ge_u32 s{sCOL}, 4")
    a(f"s_cbranch_scc1 {name}_v")

    sWM, sWN = sB0, sB1
    def qkv_setup(kind):
        a(f"s_and_b32 s{sWM}, s{sWAVE}, 3")
        a(f"s_lshr_b32 s{sWN}, s{sWAVE}, 2")
        ds_x_addr(5, sWM)
        a(f"v_lshrrev_b32 {vr(T[0])}, 5, {vr(vL)}")
        a(f"v_bfe_u32 {vr(T[1])}, {vr(vL)}, 2, 2")
        a(f"v_lshl_add_u32 {vr(T[0])}, {vr(T[0])}, 3, {vr(T[1])}")
        a(f"v_mul_u32_u24 {vr(T[0])}, 640, {vr(T[0])}")
        a(f"v_lshrrev_b32 {vr(T[1])}, 1, {vr(T[1])}")
        a(f"v_bfe_u32 {vr(T[2])}, {vr(vL)}, 4, 1")
        a(f"v_and_b32 {vr(T[3])}, 3, {vr(vL)}")
        a(f"v_lshl_add_u32 {vr(T[2])}, {vr(T[2])}, 2, {vr(T[3])}")
        if kind == 'qk':
            a(f"v_lshlrev_b32 {vr(T[2])}, 2, {vr(T[2])}")
        a(f"s_mul_i32 s{sT0}, s{sWN}, 5")
        for t in range(5):
            a(f"s_add_u32 s{sT1}, s{sT0}, {t}")
            a(f"v_xor_b32 {vr(T[3])}, s{sT1}, {vr(T[1])}")
            a(f"v_lshl_add_u32 {vr(T[3])}, {vr(T[3])}, 6, {vr(T[0])}")
            if kind == 'qk':
                a(f"s_mov_b32 s{sT2}, {lut(t):#x}")
                a(f"v_bfe_u32 {vr(T[4])}, s{sT2}, {vr(T[2])}, 3")
                a(f"v_lshl_add_u32 {vr(aW+t)}, {vr(T[4])}, 3, {vr(T[3])}")
            else:
                a(f"v_lshl_add_u32 {vr(aW+t)}, {vr(T[2])}, 3, {vr(T[3])}")
            a(f"v_add_u32 {vr(aW+5+t)}, 49152, {vr(aW+t)}")

    g = gemm_main(a, 'qk', R); next(g); qkv_setup('qk')
    for _ in g: pass
    a(f"s_and_b32 s{sT0}, s{sCOL}, 1")
    a(f"s_lshl_b32 s{sT0}, s{sT0}, 1")
    a(f"s_add_u32 s{sT0}, s{sT0}, s{sWN}")
    a(f"s_mul_i32 s{sT0}, s{sT0}, {8*81920}")
    a(f"s_lshl_b32 s{sT1}, s{sRB}, 2")
    a(f"s_add_u32 s{sT1}, s{sT1}, s{sWM}")
    a(f"s_mul_i32 s{sT1}, s{sT1}, 1280")
    a(f"s_add_u32 s{sT0}, s{sT0}, s{sT1}")
    a(f"s_cmp_ge_u32 s{sCOL}, 2")
    a(f"s_cselect_b32 s{sT1}, {KF}, {QF}")
    a(f"s_cselect_b32 s{sC0}, 1.0, {f2u(QSCALE):#x}")
    a(f"s_mov_b32 s{sC0+1}, s{sC0}")
    a(f"s_add_u32 s{sT0}, s{sT0}, s{sT1}")
    a(f"v_lshlrev_b32 {vr(T[0])}, 4, {vr(vL)}")
    a(f"v_and_b32 {vr(T[1])}, 31, {vr(vL)}")
    a(f"v_lshlrev_b32 {vr(T[1])}, 3, {vr(T[1])}")
    a(f"v_lshrrev_b32 {vr(T[2])}, 5, {vr(vL)}")
    a(f"v_mul_u32_u24 {vr(T[2])}, 81920, {vr(T[2])}")
    a(f"v_add_u32 {vr(T[1])}, {vr(T[1])}, {vr(T[2])}")
    a.nop(6)
    pk = R['fw'][0]
    def scale_pack(slot, dst):
        b = acc + 4*slot
        a(f"v_pk_mul_f32 {vr(b,2)}, {vr(b,2)}, {sr(sC0,2)}")
        a(f"v_pk_mul_f32 {vr(b+2,2)}, {vr(b+2,2)}, {sr(sC0,2)}")
        a(f"v_cvt_pk_bf16_f32 {vr(dst)}, {vr(b)}, {vr(b+1)}")
        a(f"v_cvt_pk_bf16_f32 {vr(dst+1)}, {vr(b+2)}, {vr(b+3)}")
    for h in range(8):
        d = pk + 4*h
        scale_pack(UNIT_PAIRS[h][0], d); scale_pack(UNIT_PAIRS[h][1], d+2)
        a(f"s_add_u32 s{sT1}, s{sT0}, {h*81920}")
        a.vmem(f"buffer_store_dwordx4 {vr(d,4)}, {vr(T[0])}, {sr(dWS,4)}, s{sT1} offen{st}", 'st')
        if h & 1:
            d2 = pk + 32 + 2*(h >> 1)
            scale_pack(R_SLOTS[h >> 1], d2)
            a(f"s_add_u32 s{sT2}, s{sT0}, {(h-1)*81920}")
            a.vmem(f"buffer_store_dwordx2 {vr(d2,2)}, {vr(T[1])}, {sr(dWS,4)}, s{sT2} offen offset:1024{st}", 'st')
    a("s_endpgm")
    a.vm = []; a.lg = []

    a.label(f"{name}_v")
    g = gemm_main(a, 'v', R); next(g); qkv_setup('v')
    for _ in g: pass
    a(f"s_and_b32 s{sT0}, s{sCOL}, 1")
    a(f"s_lshl_b32 s{sT0}, s{sT0}, 1")
    a(f"s_add_u32 s{sT0}, s{sT0}, s{sWN}")
    a(f"s_mul_i32 s{sT0}, s{sT0}, {8*86016}")
    a(f"s_lshl_b32 s{sT1}, s{sRB}, 2")
    a(f"s_add_u32 s{sT1}, s{sT1}, s{sWM}")
    a(f"s_mul_i32 s{sT1}, s{sT1}, 1344")
    a(f"s_add_u32 s{sT0}, s{sT0}, s{sT1}")
    a(f"s_add_u32 s{sT0}, s{sT0}, {VF}")
    a(f"v_bfe_u32 {vr(T[0])}, {vr(vL)}, 2, 3")
    a(f"v_mul_u32_u24 {vr(T[0])}, 86016, {vr(T[0])}")
    a(f"v_and_b32 {vr(T[1])}, 3, {vr(vL)}")
    a(f"v_mul_u32_u24 {vr(T[1])}, 336, {vr(T[1])}")
    a(f"v_add_u32 {vr(T[0])}, {vr(T[0])}, {vr(T[1])}")
    for i in range(4):
        a(f"v_mov_b32 {vr(pk+i)}, 0x3f803f80")
    a.vmem(f"buffer_store_dwordx4 {vr(pk,4)}, {vr(T[0])}, {sr(dWS,4)}, s{sT0} offen offset:320{st}", 'st')
    a(f"v_and_b32 {vr(T[1])}, 31, {vr(vL)}")
    a(f"v_lshrrev_b32 {vr(T[2])}, 5, {vr(vL)}")
    a(f"v_mul_u32_u24 {vr(T[2])}, 336, {vr(T[2])}")
    for t in range(5):
        a(f"v_add_u32 {vr(T[3])}, {32*t}, {vr(T[1])}")
        a(f"v_mul_u32_u24 {vr(T[4])}, 3277, {vr(T[3])}")
        a(f"v_lshrrev_b32 {vr(T[4])}, 16, {vr(T[4])}")
        a(f"v_mul_u32_u24 {vr(T[5])}, 20, {vr(T[4])}")
        a(f"v_sub_u32 {vr(T[3])}, {vr(T[3])}, {vr(T[5])}")
        a(f"v_mul_u32_u24 {vr(T[4])}, 86016, {vr(T[4])}")
        a(f"v_lshl_add_u32 {vr(T[3])}, {vr(T[3])}, 4, {vr(T[4])}")
        a(f"v_add_u32 {vr(aW+t)}, {vr(T[3])}, {vr(T[2])}")
    for t in range(5):
        for p in range(2):
            d = pk + 4 + 4*((2*t + p) % 8)
            b = acc + 16*t + 8*p
            for i in range(4):
                a(f"v_cvt_pk_bf16_f32 {vr(d+i)}, {vr(b+2*i)}, {vr(b+2*i+1)}")
            a.vmem(f"buffer_store_dwordx4 {vr(d,4)}, {vr(aW+t)}, {sr(dWS,4)}, s{sT0} offen offset:{672*p}{st}", 'st')
    a("s_endpgm")
    a.vm = []; a.lg = []

    a.label(f"{name}_gu")
    sM = sT3
    a(f"s_lshr_b32 s{sM}, s{sWAVE}, 2")
    for j in range(3):
        a(f"s_and_b32 s{sT0}, s{sWAVE}, 3")
        a(f"s_mul_i32 s{sT0}, s{sT0}, 192")
        a(f"s_add_u32 s{sT0}, s{sT0}, {64*j}")
        a(f"v_add_u32 {vr(T[0])}, s{sT0}, {vr(vL)}")
        a(f"v_mul_u32_u24 {vr(T[1])}, 2731, {vr(T[0])}")
        a(f"v_lshrrev_b32 {vr(T[1])}, 16, {vr(T[1])}")
        a(f"v_mul_u32_u24 {vr(T[2])}, 24, {vr(T[1])}")
        a(f"v_sub_u32 {vr(T[2])}, {vr(T[0])}, {vr(T[2])}")
        a(f"v_and_b32 {vr(T[3])}, 2, {vr(T[1])}")
        a(f"s_lshl_b32 s{sT1}, s{sM}, 2")
        a(f"v_or_b32 {vr(T[3])}, s{sT1}, {vr(T[3])}")
        a(f"v_xor_b32 {vr(T[2])}, {vr(T[2])}, {vr(T[3])}")
        a(f"v_mul_u32_u24 {vr(T[1])}, 3456, {vr(T[1])}")
        a(f"v_lshl_add_u32 {vr(T[1])}, {vr(T[2])}, 4, {vr(T[1])}")
        a(f"s_sub_u32 s{sT0}, s{sCOL}, 6")
        a(f"s_mul_i32 s{sT0}, s{sT0}, 384")
        a(f"s_sub_u32 s{sT0}, s{sT0}, {1024*j}")
        a(f"v_add_u32 {vr(vWo+j)}, s{sT0}, {vr(T[1])}")
    a("s_waitcnt lgkmcnt(0)")
    srd(a, dX, sXP, S*D*2)
    a(f"s_cmp_eq_u32 s{sM}, 0")
    a(f"s_cselect_b32 s{dW}, s{sWG}, s{sWU}")
    a(f"s_cselect_b32 s{dW+1}, s{sWG+1}, s{sWU+1}")
    a(f"s_mov_b32 s{dW+2}, {D*F*2}")
    a(f"s_mov_b32 s{dW+3}, 0x00020000")
    srd(a, dWS, sWS, WS_SIZE)
    g = gemm_main(a, 'gu', R); next(g)
    a(f"s_and_b32 s{sWM}, s{sWAVE}, 1")
    a(f"s_lshr_b32 s{sWN}, s{sWAVE}, 1")
    ds_x_addr(6, sWM)
    a(f"v_lshrrev_b32 {vr(T[0])}, 5, {vr(vL)}")
    a(f"v_bfe_u32 {vr(T[1])}, {vr(vL)}, 2, 2")
    a(f"v_lshl_add_u32 {vr(T[0])}, {vr(T[0])}, 3, {vr(T[1])}")
    a(f"v_mul_u32_u24 {vr(T[0])}, 384, {vr(T[0])}")
    a(f"v_bfe_u32 {vr(T[2])}, {vr(vL)}, 1, 1")
    a(f"v_mul_u32_u24 {vr(T[3])}, 12288, {vr(T[2])}")
    a(f"v_add_u32 {vr(T[0])}, {vr(T[0])}, {vr(T[3])}")
    a(f"v_lshrrev_b32 {vr(T[1])}, 1, {vr(T[1])}")
    a(f"v_lshl_add_u32 {vr(T[1])}, {vr(T[2])}, 1, {vr(T[1])}")
    a(f"v_bfe_u32 {vr(T[2])}, {vr(vL)}, 4, 1")
    a(f"v_lshl_add_u32 {vr(T[0])}, {vr(T[2])}, 4, {vr(T[0])}")
    a(f"v_and_b32 {vr(T[2])}, 1, {vr(vL)}")
    a(f"v_lshl_add_u32 {vr(T[0])}, {vr(T[2])}, 3, {vr(T[0])}")
    a(f"s_mul_i32 s{sT0}, s{sWN}, 3")
    for t in range(3):
        a(f"s_add_u32 s{sT1}, s{sT0}, {t}")
        a(f"v_xor_b32 {vr(T[3])}, s{sT1}, {vr(T[1])}")
        a(f"v_lshl_add_u32 {vr(aW+t)}, {vr(T[3])}, 5, {vr(T[0])}")
        a(f"v_add_u32 {vr(aW+3+t)}, 49152, {vr(aW+t)}")
    for _ in g: pass
    a(f"s_lshl_b32 s{sT0}, s{sRB}, 1")
    a(f"s_add_u32 s{sT0}, s{sT0}, s{sWM}")
    a(f"s_mul_i32 s{sT0}, s{sT0}, {2*108}")
    a(f"s_sub_u32 s{sT1}, s{sCOL}, 6")
    a(f"s_mul_i32 s{sT1}, s{sT1}, 12")
    a(f"s_add_u32 s{sT0}, s{sT0}, s{sT1}")
    a(f"s_mul_i32 s{sT1}, s{sWN}, 3")
    a(f"s_add_u32 s{sT0}, s{sT0}, s{sT1}")
    a(f"s_lshl_b32 s{sT0}, s{sT0}, 10")
    a(f"s_add_u32 s{sT0}, s{sT0}, {HF}")
    a(f"s_add_u32 s{sT1}, s{sT0}, {108*1024}")
    a(f"s_mov_b32 s{sC0}, {f2u(-math.log2(math.e)):#x}")
    a(f"s_mov_b32 s{sC0+1}, s{sC0}")
    a(f"s_mov_b32 s{sC1}, 1.0")
    a(f"s_mov_b32 s{sC1+1}, 1.0")
    a(f"v_lshlrev_b32 {vr(T[0])}, 4, {vr(vL)}")
    order = [(tt, t) for t in range(3) for tt in range(2)]
    for n, (tt, t) in enumerate(order):
        b = acc + 16*(tt*3 + t)
        d = pk + 4*n
        gs = [b, b+2, b+8, b+10]; us = [b+4, b+6, b+12, b+14]
        for q in gs: a(f"v_pk_mul_f32 {vr(q,2)}, {vr(q,2)}, {sr(sC0,2)}")
        for q in gs:
            a(f"v_exp_f32 {vr(q)}, {vr(q)}"); a(f"v_exp_f32 {vr(q+1)}, {vr(q+1)}")
        for q in gs: a(f"v_pk_add_f32 {vr(q,2)}, {vr(q,2)}, {sr(sC1,2)}")
        for q in gs:
            a(f"v_rcp_f32 {vr(q)}, {vr(q)}"); a(f"v_rcp_f32 {vr(q+1)}, {vr(q+1)}")
        for q, u in zip(gs, us): a(f"v_pk_mul_f32 {vr(q,2)}, {vr(q,2)}, {vr(u,2)}")
        for i, q in enumerate(gs): a(f"v_cvt_pk_bf16_f32 {vr(d+i)}, {vr(q)}, {vr(q+1)}")
        a.vmem(f"buffer_store_dwordx4 {vr(d,4)}, {vr(T[0])}, {sr(dWS,4)}, s{sT1 if tt else sT0} offen offset:{1024*t}{st}", 'st')
    a("s_endpgm")
    a.vm = []; a.lg = []

    a.label(f"{name}_misc")
    sU, sUE = sB0, sB1
    dG = 56
    a(f"s_lshl_b32 s{sT0}, s{sXCD}, 1")
    a(f"s_add_u32 s{sT0}, s{sT0}, s{sSLOT}")
    a(f"s_sub_u32 s{sT0}, s{sT0}, 30")
    a(f"s_lshl_b32 s{sT0}, s{sT0}, 3")
    a(f"s_add_u32 s{sU}, s{sT0}, s{sWAVE}")
    a("s_waitcnt lgkmcnt(0)")
    srd(a, dX, sXP, S*D*2)
    srd(a, dWS, sWS, WS_SIZE)
    srd(a, dG, sGW, D*2)
    gw = acc; xr = acc + 20
    a(f"v_and_b32 {vr(T[0])}, 15, {vr(vL)}")
    a(f"v_lshlrev_b32 {vr(T[0])}, 4, {vr(T[0])}")
    for i in range(5):
        a.vmem(f"buffer_load_dwordx4 {vr(gw+4*i,4)}, {vr(T[0])}, {sr(dG,4)}, 0 offen offset:{256*i}", 'gw')
    a(f"v_lshrrev_b32 {vr(T[1])}, 4, {vr(vL)}")
    a(f"v_mul_u32_u24 {vr(T[2])}, 1280, {vr(T[1])}")
    a(f"v_add_u32 {vr(T[0])}, {vr(T[0])}, {vr(T[2])}")
    xregs = [acc + 20, acc + 40, acc + 60, R['fw'][0]]
    for q in range(4):
        a(f"s_lshl_b32 s{sT0}, s{sU}, 4")
        a(f"s_add_u32 s{sT0}, s{sT0}, {4*q}")
        a(f"s_mul_i32 s{sT0}, s{sT0}, 1280")
        for i in range(5):
            a.vmem(f"buffer_load_dwordx4 {vr(xregs[q]+4*i,4)}, {vr(T[0])}, {sr(dX,4)}, s{sT0} offen offset:{256*i}", ('gx', q))
    vA = R['fw'][1]
    for i in range(10):
        a(f"v_add_u32 {vr(T[2])}, {64*i}, {vr(vL)}")
        a(f"v_mul_u32_u24 {vr(T[3])}, 1639, {vr(T[2])}")
        a(f"v_lshrrev_b32 {vr(T[3])}, 16, {vr(T[3])}")
        a(f"v_mul_u32_u24 {vr(T[4])}, 40, {vr(T[3])}")
        a(f"v_sub_u32 {vr(T[4])}, {vr(T[2])}, {vr(T[4])}")
        a(f"v_and_b32 {vr(T[5])}, 2, {vr(T[3])}")
        a(f"v_lshlrev_b32 {vr(T[5])}, 1, {vr(T[5])}")
        a(f"v_xor_b32 {vr(T[4])}, {vr(T[4])}, {vr(T[5])}")
        a(f"v_lshlrev_b32 {vr(T[4])}, 4, {vr(T[4])}")
        a(f"v_mul_u32_u24 {vr(T[5])}, 1280, {vr(T[3])}")
        a(f"v_add_u32 {vr(vA+i)}, {vr(T[5])}, {vr(T[4])}")
        a(f"v_lshrrev_b32 {vr(T[5])}, 2, {vr(T[3])}")
        a(f"v_mul_u32_u24 {vr(T[5])}, {16*1280}, {vr(T[5])}")
        a(f"v_add_u32 {vr(vA+10+i)}, {vr(vA+i)}, {vr(T[5])}")
    aR = aX
    a(f"v_lshrrev_b32 {vr(T[2])}, 5, {vr(vL)}")
    a(f"v_bfe_u32 {vr(T[3])}, {vr(vL)}, 2, 2")
    a(f"v_lshl_add_u32 {vr(T[2])}, {vr(T[2])}, 2, {vr(T[3])}")
    a(f"v_mul_u32_u24 {vr(T[2])}, 640, {vr(T[2])}")
    a(f"v_bfe_u32 {vr(T[4])}, {vr(vL)}, 4, 1")
    a(f"v_and_b32 {vr(T[5])}, 3, {vr(vL)}")
    a(f"v_lshl_add_u32 {vr(T[4])}, {vr(T[4])}, 2, {vr(T[5])}")
    a(f"v_lshl_add_u32 {vr(T[2])}, {vr(T[4])}, 3, {vr(T[2])}")
    a(f"s_mul_i32 s{sWW}, s{sWAVE}, 10240")
    a(f"v_add_u32 {vr(T[2])}, s{sWW}, {vr(T[2])}")
    a(f"v_lshrrev_b32 {vr(T[3])}, 1, {vr(T[3])}")
    a(f"v_lshl_add_u32 {vr(aR)}, {vr(T[3])}, 6, {vr(T[2])}")
    a(f"v_xor_b32 {vr(T[3])}, 1, {vr(T[3])}")
    a(f"v_lshl_add_u32 {vr(aR+1)}, {vr(T[3])}, 6, {vr(T[2])}")
    a(f"v_lshlrev_b32 {vr(aR+2)}, 4, {vr(vL)}")
    for q in range(4):
        a.wait(vm=('gx', q))
        z = T[4 + q] if q < 4 else None
        a(f"v_mov_b32 {vr(z)}, 0")
        for i in range(20):
            a(f"v_dot2_f32_bf16 {vr(z)}, {vr(xregs[q]+i)}, {vr(gw+i)}, {vr(z)}")
    a.nop(3)
    for sh in ("row_ror:8", "row_ror:4", "row_ror:2", "row_ror:1"):
        for q in range(4):
            z = T[4 + q]
            a(f"v_add_f32_dpp {vr(z)}, {vr(z)}, {vr(z)} {sh} row_mask:0xf bank_mask:0xf")
    a(f"v_and_b32 {vr(T[2])}, 15, {vr(vL)}")
    for q in range(1, 4):
        a(f"v_cmp_eq_u32 vcc, {q}, {vr(T[2])}")
        a("s_nop 1")
        a(f"v_cndmask_b32 {vr(T[4])}, {vr(T[4])}, {vr(T[4+q])}, vcc")
    a(f"v_mul_f32 {vr(T[4])}, {f2u(-math.log2(math.e)):#x}, {vr(T[4])}")
    a(f"v_exp_f32 {vr(T[4])}, {vr(T[4])}")
    a("s_nop 0")
    a(f"v_add_f32 {vr(T[4])}, 1.0, {vr(T[4])}")
    a(f"v_rcp_f32 {vr(T[4])}, {vr(T[4])}")
    a(f"v_lshl_add_u32 {vr(T[3])}, {vr(T[2])}, 2, {vr(T[1])}")
    a(f"v_lshlrev_b32 {vr(T[3])}, 2, {vr(T[3])}")
    a(f"v_cmp_gt_u32 vcc, 4, {vr(T[2])}")
    a(f"v_mov_b32 {vr(T[5])}, {OOB}")
    a("s_nop 0")
    a(f"v_cndmask_b32 {vr(T[3])}, {vr(T[5])}, {vr(T[3])}, vcc")
    a(f"s_lshl_b32 s{sT0}, s{sU}, 6")
    a(f"s_add_u32 s{sT0}, s{sT0}, {GG}")
    a(f"buffer_store_dword {vr(T[4])}, {vr(T[3])}, {sr(dWS,4)}, s{sT0} offen{st}")
    sKS, sHF, sSRC, sDST, sDS2 = 60, 61, 62, 63, 64
    a.label(f"{name}_unit")
    a.vm = []; a.lg = []
    a(f"s_lshr_b32 s{sKS}, s{sU}, 1")
    a(f"s_and_b32 s{sHF}, s{sU}, 1")
    a(f"s_cmp_ge_u32 s{sKS}, 108")
    a(f"s_cbranch_scc1 {name}_unit_wo")
    srd(a, dW, sWD, F*D*2)
    a(f"s_mul_i32 s{sSRC}, s{sKS}, {16*1280}")
    a(f"s_mul_i32 s{sDST}, s{sHF}, {10*110592}")
    a(f"s_lshl_b32 s{sT0}, s{sKS}, 10")
    a(f"s_add_u32 s{sDST}, s{sDST}, s{sT0}")
    a(f"s_add_u32 s{sDST}, s{sDST}, {WDF}")
    a(f"s_mov_b32 s{sDS2}, 110592")
    a(f"s_branch {name}_unit_plain")
    a.label(f"{name}_unit_wo")
    srd(a, dW, sWO, D*D*2)
    a(f"s_sub_u32 s{sKS}, s{sKS}, 108")
    a(f"s_mul_i32 s{sDST}, s{sHF}, {10*40960}")
    a(f"s_lshl_b32 s{sT0}, s{sKS}, 10")
    a(f"s_add_u32 s{sDST}, s{sDST}, s{sT0}")
    a(f"s_add_u32 s{sDST}, s{sDST}, {WOF}")
    a(f"s_mov_b32 s{sDS2}, 40960")
    a(f"s_mul_i32 s{sSRC}, s{sKS}, {20*1280}")
    a(f"s_cmp_lt_u32 s{sKS}, 32")
    a(f"s_cbranch_scc1 {name}_unit_plain")
    a(f"s_sub_u32 s{sKS}, s{sKS}, 32")
    a(f"s_mul_i32 s{sSRC}, s{sKS}, {80*1280}")
    a(f"s_add_u32 s{sSRC}, s{sSRC}, {16*1280}")
    def unit_dma(base):
        a(f"s_mul_i32 s{sT0}, s{sHF}, 640")
        a(f"s_add_u32 s{sSRC}, s{sSRC}, s{sT0}")
        for i in range(10):
            a(f"s_add_u32 m0, s{sWW}, {1024*i}")
            a("s_nop 0")
            a(f"buffer_load_dwordx4 {vr(base+i)}, {sr(dW,4)}, s{sSRC} offen lds")
    unit_dma(vA + 10)
    a(f"s_branch {name}_unit_go")
    a.label(f"{name}_unit_plain")
    unit_dma(vA)
    a.label(f"{name}_unit_go")
    a("s_waitcnt vmcnt(0)")
    fr = acc
    for n in range(10):
        for u in range(2):
            a.lds(f"ds_read_b64_tr_b16 {vr(fr+4*n+2*u,2)}, {vr(aR + (n & 1))} offset:{128*(n >> 1) + u*8*640}", n)
        if n >= 4:
            a.wait(lg=n-4)
            a(f"buffer_store_dwordx4 {vr(fr+4*(n-4),4)}, {vr(aR+2)}, {sr(dWS,4)}, s{sDST} offen{st}")
            a(f"s_add_u32 s{sDST}, s{sDST}, s{sDS2}")
    for n in range(6, 10):
        a.wait(lg=n)
        a(f"buffer_store_dwordx4 {vr(fr+4*n,4)}, {vr(aR+2)}, {sr(dWS,4)}, s{sDST} offen{st}")
        a(f"s_add_u32 s{sDST}, s{sDST}, s{sDS2}")
    a(f"s_add_u32 s{sU}, s{sU}, 128")
    a(f"s_cmp_lt_u32 s{sU}, 296")
    a("s_waitcnt vmcnt(0)")
    a(f"s_cbranch_scc1 {name}_unit")
    a.label(f"{name}_end")
    a("s_endpgm")
    return a.text(), kd(name, nv), K1_LDS
```

```python
from asmlib import *
from common import *

SLOT = [0, 83968, 41984, 0]
KV_K, KV_V = 20480, 21504
RED = 83968
XCH = 41984
K2_LDS = 163840

sWS = 4
dWS = 8
sXCD, sSLOT, sWAVE, sHEAD, sQB = 12, 13, 14, 15, 16
sT0, sT1, sT2, sT3 = 17, 18, 19, 20
sKB, sVB = 21, 22
sQG, sKH = 23, 24
sHW, sTB, sCG, sKO, sL5 = 25, 26, 27, 28, 29
sOB = 30
sI = 31

def emit_k2(name, st="", helper=True, prio=True):
    a = Asm()
    a.raw(f".globl {name}\n.p2align 8\n.type {name},@function\n{name}:")
    a("s_cmp_ge_u32 s2, 256")
    a(f"s_cbranch_scc1 {name}_end")
    a(f"s_load_dwordx2 s[{sWS}:{sWS+1}], s[0:1], 80")
    rg = Regs(1, 168)
    vL = rg.alloc('vL'); T = [rg.alloc(f't{i}') for i in range(6)]
    base_n = rg.n
    a(f"v_lshrrev_b32 {vr(T[0])}, 6, v0")
    a(f"v_and_b32 {vr(vL)}, 63, v0")
    a(f"v_readfirstlane_b32 s{sWAVE}, {vr(T[0])}")
    a(f"s_and_b32 s{sXCD}, s2, 7")
    a(f"s_lshr_b32 s{sSLOT}, s2, 3")
    a(f"s_lshr_b32 s{sT0}, s{sSLOT}, 3")
    a(f"s_lshl_b32 s{sHEAD}, s{sXCD}, 2")
    a(f"s_add_u32 s{sHEAD}, s{sHEAD}, s{sT0}")
    a(f"s_and_b32 s{sQB}, s{sSLOT}, 7")
    a(f"s_mul_i32 s{sKB}, s{sHEAD}, 81920")
    a(f"s_mul_i32 s{sVB}, s{sHEAD}, 86016")
    a(f"s_add_u32 s{sVB}, s{sVB}, {VF}")
    v16 = rg.alloc('v16')
    a(f"v_lshlrev_b32 {vr(v16)}, 4, {vr(vL)}")
    a(f"s_cmp_ge_u32 s{sWAVE}, 8")
    a(f"s_cbranch_scc1 {name}_help")

    vB8 = rg.alloc('vB8')
    aK = [rg.alloc('aK0'), rg.alloc('aK1')]; aKb = [rg.alloc('aKb0'), rg.alloc('aKb1')]; aV = [rg.alloc('aV0'), rg.alloc('aV1')]
    vVo = rg.alloc('vVo')
    Qa = [rg.alloc('Qa0', 4, 2), rg.alloc('Qa1', 4, 2)]; Qb = [rg.alloc('Qb0', 2, 2), rg.alloc('Qb1', 2, 2)]
    Ka = [rg.alloc('Ka0', 4, 2), rg.alloc('Ka1', 4, 2)]; Kb = [rg.alloc('Kb0', 2, 2), rg.alloc('Kb1', 2, 2)]
    Vf = [rg.alloc('V0', 8, 2), rg.alloc('V1', 8, 2)]
    P = [rg.alloc('P0', 8, 2), rg.alloc('P1', 8, 2)]
    Sx = [rg.alloc('S0', 16, 2), rg.alloc('S1', 16, 2)]
    O = [rg.alloc('O0', 16, 2), rg.alloc('O1', 16, 2)]
    nv_att = rg.n
    a(f"s_and_b32 s{sQG}, s{sWAVE}, 3")
    a(f"s_lshr_b32 s{sKH}, s{sWAVE}, 2")
    a(f"v_and_b32 {vr(T[0])}, 31, {vr(vL)}")
    a(f"v_lshrrev_b32 {vr(T[1])}, 5, {vr(vL)}")
    a(f"v_lshlrev_b32 {vr(T[2])}, 2, {vr(T[1])}")
    a(f"v_lshl_add_u32 {vr(vB8)}, {vr(T[0])}, 3, {vr(T[2])}")
    a(f"s_lshl_b32 s{sT0}, s{sQB}, 2")
    a(f"s_add_u32 s{sT0}, s{sT0}, s{sQG}")
    a(f"s_mul_i32 s{sT0}, s{sT0}, 2560")
    a(f"s_add_u32 s{sT0}, s{sT0}, s{sKB}")
    assert QF == 0
    a(f"s_add_u32 s{sKB}, s{sKB}, {KF}")
    a("s_waitcnt lgkmcnt(0)")
    srd(a, dWS, sWS, WS_SIZE)
    a.vmem(f"buffer_load_dwordx4 {vr(Ka[0],4)}, {vr(v16)}, {sr(dWS,4)}, s{sKB} offen", 'q')
    a.vmem(f"buffer_load_dword {vr(Kb[0])}, {vr(vB8)}, {sr(dWS,4)}, s{sKB} offen offset:1024", 'q')
    for q in range(2):
        a.vmem(f"buffer_load_dwordx4 {vr(Qa[q],4)}, {vr(v16)}, {sr(dWS,4)}, s{sT0} offen offset:{1280*q}", 'q')
        a.vmem(f"buffer_load_dword {vr(Qb[q])}, {vr(vB8)}, {sr(dWS,4)}, s{sT0} offen offset:{1280*q+1024}", 'q')
    a(f"v_cmp_eq_u32 vcc, 0, {vr(T[1])}")
    a(f"v_mov_b32 {vr(T[2])}, 0x3f80")
    a(f"v_mov_b32 {vr(T[3])}, 0x3f803f80")
    a(f"v_cndmask_b32 {vr(Kb[0]+1)}, {vr(T[2])}, {vr(T[3])}, vcc")
    a(f"v_mov_b32 {vr(Kb[1]+1)}, {vr(Kb[0]+1)}")
    a(f"v_mov_b32 {vr(Qb[0]+1)}, 0")
    a(f"v_mov_b32 {vr(Qb[1]+1)}, 0")
    a(f"s_mul_i32 s{sT1}, s{sKH}, {8*1280}")
    a(f"v_add_u32 {vr(aK[0])}, s{sT1}, {vr(v16)}")
    a(f"v_add_u32 {vr(aKb[0])}, s{sT1}, {vr(vB8)}")
    a(f"v_add_u32 {vr(aKb[0])}, 1024, {vr(aKb[0])}")
    a(f"v_min_u32 {vr(T[2])}, 20, {vr(T[0])}")
    a(f"v_cmp_lt_u32 vcc, 27, {vr(T[0])}")
    a(f"v_mul_u32_u24 {vr(T[3])}, 21, {vr(T[1])}")
    a("s_nop 0")
    a(f"v_cndmask_b32 {vr(T[2])}, {vr(T[2])}, 4, vcc")
    a(f"v_add_lshl_u32 {vr(vVo)}, {vr(T[2])}, {vr(T[3])}, 4")
    a(f"s_mul_i32 s{sT1}, s{sKH}, {8*1344}")
    a(f"s_add_u32 s{sT1}, s{sT1}, {KV_K}")
    a(f"v_add_u32 {vr(aV[0])}, s{sT1}, {vr(vVo)}")
    for r in (aK, aKb, aV):
        a(f"v_add_u32 {vr(r[1])}, {SLOT[1]}, {vr(r[0])}")

    def qk(q, kbuf):
        return [f"v_mfma_f32_32x32x16_bf16 {vr(Sx[q],16)}, {vr(Ka[kbuf],4)}, {vr(Qa[q],4)}, 0",
                f"v_mfma_f32_32x32x8_bf16 {vr(Sx[q],16)}, {vr(Kb[kbuf],2)}, {vr(Qb[q],2)}, {vr(Sx[q],16)}"]
    def pv(q, vbuf, first):
        return [f"v_mfma_f32_32x32x16_bf16 {vr(O[q],16)}, {vr(Vf[vbuf],4)}, {vr(P[q],4)}, {'0' if first else vr(O[q],16)}",
                f"v_mfma_f32_32x32x16_bf16 {vr(O[q],16)}, {vr(Vf[vbuf]+4,4)}, {vr(P[q]+4,4)}, {vr(O[q],16)}"]
    def max16(src, dst, init=None):
        a(f"v_max3_f32 {vr(dst)}, {vr(src)}, {vr(src+1)}, {vr(src+2 if init is None else init)}")
        i = 3 if init is None else 2
        while i < 16:
            if i + 1 < 16:
                a(f"v_max3_f32 {vr(dst)}, {vr(dst)}, {vr(src+i)}, {vr(src+i+1)}"); i += 2
            else:
                a(f"v_max_f32 {vr(dst)}, {vr(dst)}, {vr(src+i)}"); i += 1
    def set_shift(m, q):
        t0, t1, t2 = T[3], T[4], T[5]
        a(f"v_mov_b32 {vr(t0)}, {vr(m)}")
        a("s_nop 1")
        a(f"v_permlane32_swap_b32 {vr(m)}, {vr(t0)}")
        a(f"v_max_f32 {vr(m)}, {vr(m)}, {vr(t0)}")
        a(f"v_sub_f32 {vr(m)}, 0, {vr(m)}")
        a(f"v_and_b32 {vr(t0)}, 0xffff0000, {vr(m)}")
        a(f"v_sub_f32 {vr(m)}, {vr(m)}, {vr(t0)}")
        a(f"v_and_b32 {vr(t1)}, 0xffff0000, {vr(m)}")
        a(f"v_sub_f32 {vr(m)}, {vr(m)}, {vr(t1)}")
        a(f"v_lshrrev_b32 {vr(t0)}, 16, {vr(t0)}")
        a(f"v_or_b32 {vr(t0)}, {vr(t0)}, {vr(t1)}")
        a(f"v_lshrrev_b32 {vr(m)}, 16, {vr(m)}")
        a(f"v_cmp_gt_u32 vcc, 32, {vr(vL)}")
        a("s_nop 1")
        a(f"v_cndmask_b32 {vr(Qb[q]+1)}, {vr(m)}, {vr(t0)}, vcc")
    a.wait(vm='all')
    for q in range(2):
        for m in qk(q, 0): a(m)
    a.nop(10)
    max16(Sx[0], T[1]); max16(Sx[1], T[2])
    set_shift(T[1], 0); set_shift(T[2], 1)

    def kread(t):
        c, i = t >> 3, t & 7
        s1 = 1 if c == 1 else 0
        off = (0 if s1 else SLOT[c]) + i*1280
        return [f"ds_read_b128 {vr(Ka[t&1],4)}, {vr(aK[s1])} offset:{off}",
                f"ds_read_b32 {vr(Kb[t&1])}, {vr(aKb[s1])} offset:{off}"]
    def vread(t):
        c, i = t >> 3, t & 7
        s1 = 1 if c == 1 else 0
        off = (0 if s1 else SLOT[c]) + i*1344
        return [f"ds_read_b128 {vr(Vf[t&1]+4*p,4)}, {vr(aV[s1])} offset:{off + 672*p}" for p in range(2)]
    def valu(q):
        L = []
        for i in range(8):
            L.append(f"v_exp_f32 {vr(Sx[q]+2*i)}, {vr(Sx[q]+2*i)}")
            L.append(f"v_exp_f32 {vr(Sx[q]+2*i+1)}, {vr(Sx[q]+2*i+1)}")
            if i: L.append(f"v_cvt_pk_bf16_f32 {vr(P[q]+i-1)}, {vr(Sx[q]+2*i-2)}, {vr(Sx[q]+2*i-1)}")
        L.append(f"v_cvt_pk_bf16_f32 {vr(P[q]+7)}, {vr(Sx[q]+14)}, {vr(Sx[q]+15)}")
        return L
    def phase(q, M, Rd):
        V = valu(q)
        cuts = [0, 5, 11, 17, 24]
        M = list(M) + [None]*(4 - len(M))
        Rd = list(Rd)
        for k in range(4):
            if M[k]: a(M[k])
            if k < 2:
                for r in Rd[2*k:2*k+2]: a.lds(r, 'f')
            for v in V[cuts[k]:cuts[k+1]]: a(v)

    a("; @mark 0")
    a("s_barrier")
    a("; @mark 1")
    for r in kread(0): a.lds(r, 'f')
    a.wait(lg='all')
    for m in qk(0, 0): a(m)
    a.nop(10)
    NT = 32
    for t in range(NT):
        if t in (7, 15, 23, 27):
            a("s_barrier")
        M = qk(1, t & 1) + (pv(1, (t-1) & 1, t == 1) if t else [])
        Rd = (kread(t+1) if t + 1 < NT else []) + vread(t)
        phase(0, M, Rd)
        a.wait(lg='all')
        M = (qk(0, (t+1) & 1) if t + 1 < NT else []) + pv(0, t & 1, t == 0)
        phase(1, M, [])
    a("s_nop 0")
    for m in pv(1, (NT-1) & 1, False): a(m)
    a("; @mark 6")
    a(f"s_lshl_b32 s{sT0}, s{sQG}, 1")
    a(f"s_add_u32 s{sT1}, s{sT0}, s{sKH}")
    a(f"s_xor_b32 s{sT2}, s{sT1}, 1")
    a(f"s_mul_i32 s{sT2}, s{sT2}, 3072")
    a(f"s_add_u32 s{sT2}, s{sT2}, {XCH}")
    a(f"v_add_u32 {vr(T[0])}, s{sT2}, {vr(v16)}")
    a(f"s_mul_i32 s{sT2}, s{sT1}, 3072")
    a(f"s_add_u32 s{sT2}, s{sT2}, {XCH}")
    a(f"v_add_u32 {vr(T[1])}, s{sT2}, {vr(v16)}")
    a(f"s_lshl_b32 s{sT0}, s{sQB}, 3")
    a(f"s_add_u32 s{sT0}, s{sT0}, s{sT1}")
    a(f"s_lshl_b32 s{sT0}, s{sT0}, 5")
    a(f"s_add_u32 s{sT0}, s{sT0}, s{sHEAD}")
    a(f"s_mul_i32 s{sOB}, s{sT0}, 1280")
    a(f"s_add_u32 s{sOB}, s{sOB}, {OF}")
    a(f"s_cmp_eq_u32 s{sKH}, 0")
    a(f"s_cbranch_scc1 {name}_noswap")
    for i in range(12): a(f"v_swap_b32 {vr(O[0]+i)}, {vr(O[1]+i)}")
    for i in range(4): a(f"v_mov_b32 {vr(Qa[0]+i)}, {vr(Qa[1]+i)}")
    a(f"v_mov_b32 {vr(Qb[0])}, {vr(Qb[1])}")
    a.label(f"{name}_noswap")
    for i in range(3): a(f"ds_write_b128 {vr(T[0])}, {vr(O[1]+4*i,4)} offset:{1024*i}")
    a("s_waitcnt lgkmcnt(0)")
    a("s_barrier")
    for i in range(3): a(f"ds_read_b128 {vr(O[1]+4*i,4)}, {vr(T[1])} offset:{1024*i}")
    a(f"v_lshlrev_b32 {vr(T[2])}, 3, {vr(vL)}")
    a(f"v_cmp_gt_u32 vcc, 32, {vr(vL)}")
    a(f"v_mov_b32 {vr(T[3])}, {OOB}")
    a("s_nop 0")
    a(f"v_cndmask_b32 {vr(vB8 if False else T[2])}, {vr(T[3])}, {vr(T[2])}, vcc")
    a("s_waitcnt lgkmcnt(0)")
    for i in range(0, 12, 2):
        a(f"v_pk_add_f32 {vr(O[0]+i,2)}, {vr(O[0]+i,2)}, {vr(O[1]+i,2)}")
    def finish(check):
        l0, l1 = T[3], T[4]
        a(f"v_mov_b32 {vr(l0)}, {vr(O[0]+8)}")
        a(f"v_mov_b32 {vr(l1)}, {vr(O[0]+8)}")
        a("s_nop 1")
        a(f"v_permlane32_swap_b32 {vr(l0)}, {vr(l1)}")
        a(f"v_rcp_f32 {vr(l0)}, {vr(l1)}")
        if check:
            a(f"v_and_b32 {vr(T[5])}, 0x7fffffff, {vr(O[0])}")
            for i in range(1, 8):
                a(f"v_and_b32 {vr(T[0])}, 0x7fffffff, {vr(O[0]+i)}")
                a(f"v_max_u32 {vr(T[5])}, {vr(T[5])}, {vr(T[0])}")
            for i in range(8, 12):
                a(f"v_and_b32 {vr(T[0])}, 0x7fffffff, {vr(O[0]+i)}")
                a(f"v_cndmask_b32 {vr(T[0])}, 0, {vr(T[0])}, vcc")
                a(f"v_max_u32 {vr(T[5])}, {vr(T[5])}, {vr(T[0])}")
            a(f"v_cmp_le_u32 s[34:35], 0x7f800000, {vr(T[5])}" if False else f"v_mov_b32 {vr(T[0])}, 0x7f800000")
            a(f"v_cmp_ge_u32 s[34:35], {vr(T[5])}, {vr(T[0])}")
            a(f"v_mov_b32 {vr(T[0])}, {f2u(2.0**100):#x}")
            a(f"v_cmp_nlt_f32 s[36:37], {vr(l1)}, {vr(T[0])}")
            a("s_nop 1")
            a("s_or_b64 s[34:35], s[34:35], s[36:37]")
            a(f"s_cbranch_scc1 {name}_slow")
        else:
            a("s_nop 0")
        for i in range(12):
            a(f"v_mul_f32 {vr(O[0]+i)}, {vr(O[0]+i)}, {vr(l0)}")
        for i in range(6):
            a(f"v_cvt_pk_bf16_f32 {vr(P[0]+i)}, {vr(O[0]+2*i)}, {vr(O[0]+2*i+1)}")
        a(f"buffer_store_dwordx4 {vr(P[0],4)}, {vr(v16)}, {sr(dWS,4)}, s{sOB} offen{st}")
        a(f"buffer_store_dwordx2 {vr(P[0]+4,2)}, {vr(T[2])}, {sr(dWS,4)}, s{sOB} offen offset:1024{st}")
        a("s_endpgm")
    finish(True)

    a.label(f"{name}_slow")
    a(f"v_mov_b32 {vr(Qb[0]+1)}, 0")
    a(f"v_mov_b32 {vr(T[1])}, 0xff800000")
    a(f"s_mov_b32 s{sI}, s{sKB}")
    a(f"s_add_u32 s{sT3}, s{sKB}, 81920")
    a.label(f"{name}_slow1")
    a(f"buffer_load_dwordx4 {vr(Ka[0],4)}, {vr(v16)}, {sr(dWS,4)}, s{sI} offen")
    a(f"buffer_load_dword {vr(Kb[0])}, {vr(vB8)}, {sr(dWS,4)}, s{sI} offen offset:1024")
    a("s_waitcnt vmcnt(0)")
    for m in qk(0, 0): a(m)
    a.nop(12)
    max16(Sx[0], T[1], T[1])
    a(f"s_add_u32 s{sI}, s{sI}, 1280")
    a(f"s_cmp_lt_u32 s{sI}, s{sT3}")
    a(f"s_cbranch_scc1 {name}_slow1")
    set_shift(T[1], 0)
    for i in range(16): a(f"v_mov_b32 {vr(O[0]+i)}, 0")
    a(f"s_mov_b32 s{sI}, s{sKB}")
    a(f"s_mov_b32 s{sT0}, s{sVB}")
    a.label(f"{name}_slow2")
    a(f"buffer_load_dwordx4 {vr(Ka[0],4)}, {vr(v16)}, {sr(dWS,4)}, s{sI} offen")
    a(f"buffer_load_dword {vr(Kb[0])}, {vr(vB8)}, {sr(dWS,4)}, s{sI} offen offset:1024")
    a(f"buffer_load_dwordx4 {vr(Vf[0],4)}, {vr(vVo)}, {sr(dWS,4)}, s{sT0} offen")
    a(f"buffer_load_dwordx4 {vr(Vf[0]+4,4)}, {vr(vVo)}, {sr(dWS,4)}, s{sT0} offen offset:672")
    a("s_waitcnt vmcnt(0)")
    for m in qk(0, 0): a(m)
    a.nop(12)
    for v in valu(0): a(v)
    a.nop(2)
    for m in pv(0, 0, False): a(m)
    a(f"s_add_u32 s{sI}, s{sI}, 1280")
    a(f"s_add_u32 s{sT0}, s{sT0}, 1344")
    a(f"s_cmp_lt_u32 s{sI}, s{sT3}")
    a(f"s_cbranch_scc1 {name}_slow2")
    a.nop(12)
    finish(False)

    a.label(f"{name}_help")
    a.vm = []; a.lg = []
    rg.n = base_n + 1
    aH = rg.alloc('aH'); aWd = rg.alloc('aWd', 5)
    FR = [rg.alloc(f'fr{i}', 24, 2) for i in range(3)]
    ACC = rg.alloc('acc', 80, 2)
    nv = max(nv_att, rg.n)
    a(f"s_sub_u32 s{sHW}, s{sWAVE}, 8")
    a(f"s_add_u32 s{sKB}, s{sKB}, {KF}")
    a(f"s_mul_i32 s{sL5}, s{sHW}, 5120")
    a(f"s_add_u32 s{sKB}, s{sKB}, s{sL5}")
    a(f"s_add_u32 s{sT3}, s{sVB}, s{sL5}")
    a("s_waitcnt lgkmcnt(0)")
    srd(a, dWS, sWS, WS_SIZE)
    def dma(src, srcoff, lds_s, ldsoff, n, tag):
        if lds_s is None: a(f"s_mov_b32 m0, {ldsoff}")
        else: a(f"s_add_u32 m0, s{lds_s}, {ldsoff}")
        a(f"s_add_u32 s{sT0}, s{src}, {srcoff}")
        for j in range(n):
            a.vmem(f"buffer_load_dwordx4 {vr(v16)}, {sr(dWS,4)}, s{sT0} offen offset:{1024*j} lds", tag)
    def chunk(c):
        tag = ('c', c)
        dma(sKB, c*KV_K, sL5, SLOT[c], 4, tag)
        dma(sKB, c*KV_K + 4096, sL5, SLOT[c] + 4096, 1, tag)
        dma(sT3, c*KV_V, sL5, SLOT[c] + KV_K, 4, tag)
        dma(sT3, c*KV_V + 4096, sL5, SLOT[c] + KV_K + 4096, 1, tag)
        dma(sVB, c*KV_V + 20480, None, SLOT[c] + KV_K + 20480, 1, tag)
    chunk(0); chunk(1)
    a(f"s_lshr_b32 s{sTB}, s{sXCD}, 1")
    a(f"s_lshl_b32 s{sTB}, s{sTB}, 4")
    a(f"s_lshr_b32 s{sT0}, s{sSLOT}, 1")
    a(f"s_add_u32 s{sTB}, s{sTB}, s{sT0}")
    a(f"s_and_b32 s{sCG}, s{sXCD}, 1")
    a(f"s_lshl_b32 s{sCG}, s{sCG}, 1")
    a(f"s_and_b32 s{sT0}, s{sSLOT}, 1")
    a(f"s_add_u32 s{sCG}, s{sCG}, s{sT0}")
    a(f"s_mul_i32 s{sT0}, s{sTB}, {108*1024}")
    a(f"s_add_u32 s{sT0}, s{sT0}, {HF}")
    a(f"v_add_u32 {vr(aH)}, s{sT0}, {vr(v16)}")
    a(f"s_mul_i32 s{sT0}, s{sCG}, {5*110592}")
    a(f"s_add_u32 s{sT0}, s{sT0}, {WDF}")
    for i in range(5):
        a(f"v_add_u32 {vr(aWd+i)}, s{sT0}, {vr(v16)}")
        if i < 4: a(f"s_add_u32 s{sT0}, s{sT0}, 110592")
    a(f"s_mul_i32 s{sKO}, s{sHW}, {27*1024}")
    def dload(k):
        f = FR[k % 3]
        if k and k % 4 == 0: a(f"s_add_u32 s{sKO}, s{sKO}, 4096")
        o = 1024*(k % 4)
        a.vmem(f"buffer_load_dwordx4 {vr(f,4)}, {vr(aH)}, {sr(dWS,4)}, s{sKO} offen offset:{o}", ('d', k))
        for i in range(5):
            a.vmem(f"buffer_load_dwordx4 {vr(f+4+4*i,4)}, {vr(aWd+i)}, {sr(dWS,4)}, s{sKO} offen offset:{o}", ('d', k))
    def dstep(k):
        a.wait(vm=('d', k))
        f = FR[k % 3]
        for i in range(5):
            a(f"v_mfma_f32_32x32x16_bf16 {vr(ACC+16*i,16)}, {vr(f+4+4*i,4)}, {vr(f,4)}, {'0' if k == 0 else vr(ACC+16*i,16)}")
        if k + 3 < 27: dload(k + 3)
    chunk(2)
    a.wait(vm=('c', 0))
    a("; @mark 0")
    a("s_barrier")
    if helper:
        dload(0); dload(1); dload(2)
        for k in range(0, 9): dstep(k)
    a.wait(vm=('c', 1))
    a("; @mark 2")
    a("s_barrier")
    if helper:
        for k in range(9, 18): dstep(k)
    a.wait(vm=('c', 2))
    a("; @mark 3")
    a("s_barrier")
    chunk(3)
    if helper:
        for k in range(18, 27): dstep(k)
    a.wait(vm='all')
    a.nop(10)
    a("; @mark 4")
    a("s_barrier")
    if helper:
        for own in range(4):
            a(f"s_cmp_eq_u32 s{sHW}, {own}")
            a(f"s_cbranch_scc1 {name}_skip{own}")
            a(f"s_sub_u32 s{sT0}, s{sHW}, {own + 1}")
            a(f"s_and_b32 s{sT0}, s{sT0}, 3")
            a(f"s_mul_i32 s{sT0}, s{sT0}, 5120")
            a(f"s_add_u32 s{sT0}, s{sT0}, {RED + own*15360}")
            a(f"v_add_u32 {vr(T[0])}, s{sT0}, {vr(v16)}")
            for t in range(5):
                a(f"ds_write_b128 {vr(T[0])}, {vr(ACC+16*t+4*own,4)} offset:{1024*t}")
            a(f"s_branch {name}_next{own}")
            a.label(f"{name}_skip{own}")
            for t in range(5):
                for i in range(4):
                    a(f"v_mov_b32 {vr(FR[0]+4*t+i)}, {vr(ACC+16*t+4*own+i)}")
            a.label(f"{name}_next{own}")
        a("s_waitcnt lgkmcnt(0)")
    a("s_barrier")
    if helper:
        a(f"s_mul_i32 s{sT0}, s{sHW}, 15360")
        a(f"s_add_u32 s{sT0}, s{sT0}, {RED}")
        a(f"v_add_u32 {vr(T[0])}, s{sT0}, {vr(v16)}")
        for snd in range(3):
            for t in range(5):
                a(f"ds_read_b128 {vr(ACC+20*snd+4*t,4)}, {vr(T[0])} offset:{5120*snd + 1024*t}")
        a(f"s_lshl_b32 s{sT0}, s{sTB}, 2")
        a(f"s_add_u32 s{sT0}, s{sT0}, s{sCG}")
        a(f"s_mul_i32 s{sT0}, s{sT0}, 10240")
        a(f"s_lshl_b32 s{sT1}, s{sHW}, 9")
        a(f"s_add_u32 s{sT0}, s{sT0}, s{sT1}")
        a(f"s_add_u32 s{sT0}, s{sT0}, {BF}")
        a(f"v_lshlrev_b32 {vr(T[1])}, 3, {vr(vL)}")
        a("s_waitcnt lgkmcnt(0)")
        for snd in range(3):
            for i in range(0, 20, 2):
                a(f"v_pk_add_f32 {vr(FR[0]+i,2)}, {vr(FR[0]+i,2)}, {vr(ACC+20*snd+i,2)}")
        for t in range(5):
            a(f"v_cvt_pk_bf16_f32 {vr(FR[1]+2*t)}, {vr(FR[0]+4*t)}, {vr(FR[0]+4*t+1)}")
            a(f"v_cvt_pk_bf16_f32 {vr(FR[1]+2*t+1)}, {vr(FR[0]+4*t+2)}, {vr(FR[0]+4*t+3)}")
            if t == 2: a(f"s_add_u32 s{sT0}, s{sT0}, 4096")
            if t == 4: a(f"s_add_u32 s{sT0}, s{sT0}, 4096")
            a(f"buffer_store_dwordx2 {vr(FR[1]+2*t,2)}, {vr(T[1])}, {sr(dWS,4)}, s{sT0} offen offset:{2048*(t & 1)}{st}")
    a("s_barrier")
    a.label(f"{name}_end")
    a("s_endpgm")
    return a.text(), kd(name, nv), K2_LDS
```

```python
from asmlib import *
from common import *
K3_LDS = 40960
sWS, sOUT = 4, 6
dWS, dO = 8, 12
sXCD, sSLOT, sWAVE, sTB, sCG, sT0, sT1, sNT = 16, 17, 18, 19, 20, 21, 22, 23

def emit_k3(name, st=""):
    a = Asm()
    a.raw(f".globl {name}\n.p2align 8\n.type {name},@function\n{name}:")
    a("s_cmp_ge_u32 s2, 256")
    a(f"s_cbranch_scc1 {name}_end")
    a(f"s_load_dwordx2 s[{sWS}:{sWS+1}], s[0:1], 80")
    a(f"s_load_dwordx2 s[{sOUT}:{sOUT+1}], s[0:1], 64")
    rg = Regs(1, 256)
    vL = rg.alloc('vL'); T = [rg.alloc(f't{i}') for i in range(6)]
    v16 = rg.alloc('v16'); vG = rg.alloc('g'); aR = rg.alloc('aR')
    Bq = rg.alloc('b', 8, 2)
    OFR = [rg.alloc(f'of{i}', 4, 2) for i in range(4)]
    ACC = rg.alloc('acc', 16, 2)
    W = rg.alloc('w', 160, 2)
    nv = rg.n
    a(f"v_lshrrev_b32 {vr(T[0])}, 6, v0")
    a(f"v_and_b32 {vr(vL)}, 63, v0")
    a(f"v_readfirstlane_b32 s{sWAVE}, {vr(T[0])}")
    a(f"s_and_b32 s{sXCD}, s2, 7")
    a(f"s_lshr_b32 s{sSLOT}, s2, 3")
    a(f"s_lshr_b32 s{sTB}, s{sXCD}, 1")
    a(f"s_lshl_b32 s{sTB}, s{sTB}, 4")
    a(f"s_lshr_b32 s{sT0}, s{sSLOT}, 1")
    a(f"s_add_u32 s{sTB}, s{sTB}, s{sT0}")
    a(f"s_and_b32 s{sCG}, s{sXCD}, 1")
    a(f"s_lshl_b32 s{sCG}, s{sCG}, 1")
    a(f"s_and_b32 s{sT0}, s{sSLOT}, 1")
    a(f"s_add_u32 s{sCG}, s{sCG}, s{sT0}")
    a(f"v_lshlrev_b32 {vr(v16)}, 4, {vr(vL)}")
    a(f"s_mul_i32 s{sNT}, s{sCG}, 5")
    a(f"s_add_u32 s{sNT}, s{sNT}, s{sWAVE}")
    a(f"s_mul_i32 s{sT0}, s{sTB}, 40960")
    a(f"s_lshl_b32 s{sT1}, s{sWAVE}, 13")
    a(f"s_add_u32 s{sT0}, s{sT0}, s{sT1}")
    a(f"s_add_u32 s{sT0}, s{sT0}, {OF}")
    a(f"s_mov_b32 m0, s{sT1}")
    a("s_waitcnt lgkmcnt(0)")
    srd(a, dWS, sWS, WS_SIZE)
    for g in range(2):
        if g:
            a(f"s_add_u32 m0, s{sT1}, 4096")
            a(f"s_add_u32 s{sT0}, s{sT0}, 4096")
        for j in range(4):
            a.vmem(f"buffer_load_dwordx4 {vr(v16)}, {sr(dWS,4)}, s{sT0} offen offset:{1024*j} lds", 'o')
    a(f"s_mul_i32 s{sT0}, s{sNT}, 40960")
    a(f"s_add_u32 s{sT0}, s{sT0}, {WOF}")
    for k in range(40):
        if k and k % 4 == 0: a(f"s_add_u32 s{sT0}, s{sT0}, 4096")
        a.vmem(f"buffer_load_dwordx4 {vr(W+4*k,4)}, {vr(v16)}, {sr(dWS,4)}, s{sT0} offen offset:{1024*(k % 4)}", ('w', k))
    a(f"s_lshl_b32 s{sT0}, s{sTB}, 2")
    a(f"s_add_u32 s{sT0}, s{sT0}, s{sCG}")
    a(f"s_mul_i32 s{sT0}, s{sT0}, 10240")
    a(f"s_lshl_b32 s{sT1}, s{sWAVE}, 11")
    a(f"s_add_u32 s{sT0}, s{sT0}, s{sT1}")
    a(f"s_add_u32 s{sT0}, s{sT0}, {BF}")
    a(f"v_lshlrev_b32 {vr(T[1])}, 3, {vr(vL)}")
    for q in range(4):
        a.vmem(f"buffer_load_dwordx2 {vr(Bq+2*q,2)}, {vr(T[1])}, {sr(dWS,4)}, s{sT0} offen offset:{512*q}", 'b')
    a(f"v_and_b32 {vr(T[2])}, 31, {vr(vL)}")
    a(f"v_lshlrev_b32 {vr(T[3])}, 2, {vr(T[2])}")
    a(f"s_lshl_b32 s{sT0}, s{sTB}, 7")
    a(f"s_add_u32 s{sT0}, s{sT0}, {GG}")
    a.vmem(f"buffer_load_dword {vr(vG)}, {vr(T[3])}, {sr(dWS,4)}, s{sT0} offen", 'b')
    srd(a, dO, sOUT, S*D*2)
    a(f"v_lshrrev_b32 {vr(T[4])}, 5, {vr(vL)}")
    a(f"v_mul_u32_u24 {vr(aR)}, 1280, {vr(T[4])}")
    a(f"v_lshl_add_u32 {vr(aR)}, {vr(T[2])}, 3, {vr(aR)}")
    a(f"v_mul_u32_u24 {vr(T[5])}, 1280, {vr(T[2])}")
    a(f"v_lshl_add_u32 {vr(T[5])}, {vr(T[4])}, 4, {vr(T[5])}")
    a(f"s_mul_i32 s{sT0}, s{sTB}, {32*1280}")
    a(f"s_lshl_b32 s{sT1}, s{sNT}, 6")
    a(f"s_add_u32 s{sT1}, s{sT0}, s{sT1}")
    a("; @mark 0")
    a.wait(vm='o')
    a("; @mark 1")
    a("s_barrier")
    def oread(k):
        f = OFR[k % 4]
        if k < 32:
            a.lds(f"ds_read_b128 {vr(f,4)}, {vr(v16)} offset:{k*1280}", k)
        else:
            g = k - 32
            a.lds(f"ds_read_b64 {vr(f,2)}, {vr(aR)} offset:{(4*g)*1280 + 1024}", k)
            a.lds(f"ds_read_b64 {vr(f+2,2)}, {vr(aR)} offset:{(4*g+2)*1280 + 1024}", k)
    for k in range(3): oread(k)
    for k in range(40):
        a.wait(vm=('w', k), lg=k)
        a(f"v_mfma_f32_32x32x16_bf16 {vr(ACC,16)}, {vr(W+4*k,4)}, {vr(OFR[k % 4],4)}, {'0' if k == 0 else vr(ACC,16)}")
        if k + 3 < 40: oread(k + 3)
    a("; @mark 2")
    a.wait(vm='all')
    for i in range(8):
        a(f"v_lshlrev_b32 {vr(W+2*i)}, 16, {vr(Bq+i)}")
        a(f"v_and_b32 {vr(W+2*i+1)}, 0xffff0000, {vr(Bq+i)}")
    for i in range(16):
        a(f"v_sub_f32 {vr(ACC+i)}, {vr(ACC+i)}, {vr(W+i)}")
        a(f"v_fma_f32 {vr(ACC+i)}, {vr(ACC+i)}, {vr(vG)}, {vr(W+i)}")
    for i in range(8):
        a(f"v_cvt_pk_bf16_f32 {vr(Bq+i)}, {vr(ACC+2*i)}, {vr(ACC+2*i+1)}")
    a("s_nop 1")
    for p in range(2):
        a(f"v_permlane32_swap_b32 {vr(Bq+4*p)}, {vr(Bq+4*p+2)}")
        a(f"v_permlane32_swap_b32 {vr(Bq+4*p+1)}, {vr(Bq+4*p+3)}")
    for p in range(2):
        a(f"buffer_store_dwordx4 {vr(Bq+4*p,4)}, {vr(T[5])}, {sr(dO,4)}, s{sT1} offen offset:{32*p}{st}")
    a.label(f"{name}_end")
    a("s_endpgm")
    return a.text(), kd(name, nv), K3_LDS
```

```python
import re, build, mk
def stamp(txt, name):
    s0 = 84
    head = f"{name}:\n"
    i = txt.index(head) + len(head)
    pre = f"""    s_memrealtime s[{s0}:{s0+1}]
    s_memtime s[{s0+2}:{s0+3}]
    s_load_dwordx2 s[92:93], s[0:1], 72
    v_lshrrev_b32 v1, 6, v0
    s_nop 0
    v_readfirstlane_b32 s83, v1
"""
    body = txt[i:]
    body = re.sub(r"; @mark (\d+)", lambda m: f"s_memtime s[{66+2*int(m.group(1))}:{67+2*int(m.group(1))}]", body)
    post = f"""    s_waitcnt vmcnt(0) lgkmcnt(0)
    s_memrealtime s[{s0+4}:{s0+5}]
    s_memtime s[{s0+6}:{s0+7}]
    s_cmp_lg_u32 s83, 0
    s_cbranch_scc1 {name}_dx@N
    s_and_b32 s3, s2, 63
    s_cmp_lg_u32 s3, 3
    s_cbranch_scc1 {name}_dx@N
    s_cmp_ge_u32 s2, 256
    s_cbranch_scc1 {name}_dx@N
    s_mov_b32 s94, 256
    s_mov_b32 s95, 0x00020000
    s_lshr_b32 s3, s2, 6
    s_lshl_b32 s3, s3, 4
    v_mov_b32 v1, s3
    s_waitcnt lgkmcnt(0)
    s_sub_u32 s66, s66, s86
    s_sub_u32 s74, s74, s86
    s_sub_u32 s90, s90, s86
    s_sub_u32 s88, s88, s84
    v_mov_b32 v4, s66
    v_mov_b32 v5, s74
    v_mov_b32 v6, s90
    v_mov_b32 v7, s88
    buffer_store_dwordx4 v[4:7], v1, s[92:95], 0 offen
{name}_dx@N:
    s_endpgm
"""
    n = [0]
    def rep(m):
        n[0] += 1
        return post.replace("@N", str(n[0]))
    body = re.sub(r"    s_endpgm\n", rep, body)
    return txt[:i] + pre + body
p = mk.parts()
name, g, b, (txt, desc, lds) = p[0]
p[0] = (name, g, b, (stamp(txt, name), desc, lds))
build.build(p, "vdbg.s")
p = mk.parts(" sc1", " sc1", "")
build.build(p, "vsc1.s")
```

```python
import re
import numpy as np
DIAG = 0x8000000
MARK = 0x8100000
def stamp(txt, name, kidx):
    s0 = 84
    head = f"{name}:\n"
    i = txt.index(head) + len(head)
    pre = f"""    s_memrealtime s[{s0}:{s0+1}]
    s_memtime s[{s0+2}:{s0+3}]
    s_load_dwordx2 s[92:93], s[0:1], 80
    v_lshrrev_b32 v1, 6, v0
    s_nop 0
    v_readfirstlane_b32 s83, v1
"""
    body = txt[i:]
    marks = sorted(set(int(x) for x in re.findall(r"; @mark (\d+)", body)))
    body = re.sub(r"; @mark (\d+)", lambda m: f"s_memtime s[{66+2*int(m.group(1))}:{67+2*int(m.group(1))}]", body)
    mk = ""
    for m in range(8):
        mk += f"    v_mov_b32 v{8+m}, s{66+2*m}\n"
    post = f"""    s_waitcnt vmcnt(0) lgkmcnt(0)
    s_memrealtime s[{s0+4}:{s0+5}]
    s_memtime s[{s0+6}:{s0+7}]
    s_cmp_ge_u32 s2, 256
    s_cbranch_scc1 {name}_dx@N
    s_mov_b32 s94, 0x10000000
    s_mov_b32 s95, 0x00020000
    s_lshl_b32 s3, s2, 4
    s_add_u32 s3, s3, s83
    s_lshl_b32 s82, s3, 5
    s_lshl_b32 s3, s3, 4
    s_add_u32 s3, s3, {DIAG + kidx*65536}
    s_add_u32 s82, s82, {MARK + kidx*131072}
    v_mov_b32 v1, s3
    v_mov_b32 v2, s82
    s_waitcnt lgkmcnt(0)
    v_mov_b32 v4, s{s0}
    v_mov_b32 v5, s{s0+4}
    v_mov_b32 v6, s{s0+2}
    v_mov_b32 v7, s{s0+6}
{mk}    buffer_store_dwordx4 v[4:7], v1, s[92:95], 0 offen
    buffer_store_dwordx4 v[8:11], v2, s[92:95], 0 offen
    buffer_store_dwordx4 v[12:15], v2, s[92:95], 0 offen offset:16
{name}_dx@N:
    s_endpgm
"""
    n = [0]
    def rep(m):
        n[0] += 1
        return post.replace("@N", str(n[0]))
    body = re.sub(r"    s_endpgm\n", rep, body)
    return txt[:i] + pre + body
def diag_parts(parts):
    return [(name, grid, block, (stamp(txt, name, idx), desc, lds)) for idx, (name, grid, block, (txt, desc, lds)) in enumerate(parts)]
def report(st, parts, verbose=True):
    t0 = None; res = []
    for idx, (name, grid, block, _) in enumerate(parts):
        nw = block // 64
        d = st.wsget(DIAG + idx*65536, 65536, np.uint32).reshape(256, 16, 4)[:, :nw].astype(np.int64)
        rs, re_, cs, ce = d[..., 0], d[..., 1], d[..., 2], d[..., 3]
        if t0 is None: t0 = rs.min()
        cyc = (ce - cs) & 0xffffffff
        dur = (re_ - rs)
        clk = cyc.sum() / dur.sum() / 10.0
        res.append(((rs.min()-t0)/100, (rs.max()-t0)/100, (re_.min()-t0)/100, (re_.max()-t0)/100, cyc.mean(), cyc.max(), clk))
    return res
def marks(st, idx, nw):
    d = st.wsget(DIAG + idx*65536, 65536, np.uint32).reshape(256, 16, 4)[:, :nw].astype(np.int64)
    m = st.wsget(MARK + idx*131072, 131072, np.uint32).reshape(256, 16, 8)[:, :nw].astype(np.int64)
    rel = (m - d[..., 2:3]) & 0xffffffff
    end = (d[..., 3] - d[..., 2]) & 0xffffffff
    return rel, end
```

```python
import re, build, mk, diag
p = mk.parts()
dp = diag.diag_parts(p)
name, g, b, (txt, desc, lds) = dp[2]
extra = f"""    s_cmp_lg_u32 s2, 3
    s_cbranch_scc1 {name}_dx1
    s_cmp_lg_u32 s83, 0
    s_cbranch_scc1 {name}_dx1
    s_load_dwordx2 s[40:41], s[0:1], 72
    v_mov_b32 v1, {diag.DIAG + 3*16*16}
    v_mov_b32 v2, {diag.MARK + 3*16*32}
    buffer_load_dwordx4 v[8:11], v1, s[92:95], 0 offen sc1
    v_add_u32 v1, 65536, v1
    buffer_load_dwordx4 v[12:15], v1, s[92:95], 0 offen sc1
    buffer_load_dwordx4 v[16:19], v2, s[92:95], 0 offen sc1
    buffer_load_dwordx4 v[20:23], v2, s[92:95], 0 offen offset:16 sc1
    v_add_u32 v2, 131072, v2
    buffer_load_dwordx4 v[24:27], v2, s[92:95], 0 offen sc1
    s_waitcnt vmcnt(0) lgkmcnt(0)
    s_mov_b32 s42, 256
    s_mov_b32 s43, 0x00020000
    v_sub_u32 v32, v9, v8
    v_sub_u32 v33, v12, v8
    v_sub_u32 v34, v13, v8
    v_sub_u32 v35, v4, v8
    v_sub_u32 v36, v5, v8
    v_sub_u32 v37, v11, v10
    v_sub_u32 v38, v15, v14
    v_sub_u32 v39, v7, v6
    v_sub_u32 v40, v16, v10
    v_sub_u32 v41, v20, v10
    v_sub_u32 v42, v24, v14
    v_sub_u32 v43, v25, v14
    v_mov_b32 v1, 0
    buffer_store_dwordx4 v[32:35], v1, s[40:43], 0 offen
    buffer_store_dwordx4 v[36:39], v1, s[40:43], 0 offen offset:16
    buffer_store_dwordx4 v[40:43], v1, s[40:43], 0 offen offset:32
"""
txt = txt.replace(f"{name}_dx1:\n", extra + f"{name}_dx1:\n")
dp[2] = (name, g, b, (txt, desc, lds))
build.build(dp, "vdbg.s")
```

```python
from asmlib import *
from common import *

WRING = 0
XRING = 98304
K1_LDS = XRING + 3*16384
NSTEP = 20
DPOS = [(3, 4), (3, 4)]
RPM = [3, 2]

sXP, sWQ, sWO, sBX, sWG, sWU, sWD, sGW = 4, 6, 8, 10, 12, 14, 16, 18
sWS = 20
dX, dW, dWS = 24, 28, 32
sXCD, sSLOT, sWAVE, sCOL, sRB, sT0, sT1, sT2, sT3 = 36, 37, 38, 39, 40, 41, 42, 43, 44
sXW, sWW, sWK = 45, 46, 47
sC0 = 48
sC1 = 50
sB0, sB1 = 52, 53

def gemm_main(a, kind, R):
    gu = kind == 'gu'
    NT = 2 if gu else 1
    NW = 3 if gu else 5
    pitchL = 384 if gu else 640
    pitchG = 3456 if gu else 3840
    acc, fx, fw = R['acc'], R['fx'], R['fw']
    vWo, vXo, aX, aW = R['vWo'], R['vXo'], R['aX'], R['aW']

    def dma_w1(s, j):
        if j == 0:
            a(f"s_add_u32 m0, s{sWW}, {WRING + (s % 4)*24576}")
            a(f"s_mov_b32 s{sWK}, {s*32*pitchG}")
        a.vmem(f"buffer_load_dwordx4 {vr(vWo+j)}, {sr(dW,4)}, s{sWK} offen offset:{1024*j} lds", ('w', s))
    def dma_w(s):
        for j in range(3): dma_w1(s, j)
    def dma_x(b, j):
        a(f"s_add_u32 m0, s{sXW}, {XRING + (b % 3)*16384 + j*1024 - b*128}")
        a("s_nop 0")
        a.vmem(f"buffer_load_dwordx4 {vr(vXo+j)}, {sr(dX,4)}, 0 offen offset:{b*128} lds", ('x', b))
    def reads(s, e1):
        L = []
        b, e = s >> 1, 2*(s & 1) + e1
        for tt in range(NT):
            L.append(f"ds_read_b128 {vr(fx[e1]+4*tt,4)}, {vr(aX+e)} offset:{(b % 3)*16384 + tt*4096}")
        slot = s % 4
        for t in range(NW):
            for u in range(2):
                L.append(f"ds_read_b64_tr_b16 {vr(fw[e1]+4*t+2*u,2)}, {vr(aW + (slot >> 1)*NW + t)} "
                         f"offset:{(slot & 1)*24576 + (16*e1 + 4*u)*pitchL}")
        return L
    def mfmas(st, first):
        L = []
        order = [(tt, t) for t in range(NW) for tt in range(NT)]
        for tt, t in order:
            d = acc + 16*(tt*NW + t)
            A, B = vr(fw[st]+4*t, 4), vr(fx[st]+4*tt, 4)
            if kind == 'v': A, B = B, A
            L.append(f"v_mfma_f32_32x32x16_bf16 {vr(d,16)}, {A}, {B}, {'0' if first else vr(d,16)}")
        return L
    def block(M, Rd, ex=()):
        Rd = list(Rd); ex = list(ex)
        pos = DPOS[kind == 'gu']
        for i, m in enumerate(M):
            a(m)
            for _ in range(RPM[kind == 'gu']):
                if Rd: a.lds(Rd.pop(0), 'f')
            while ex and pos[2 - len(ex)] <= i:
                ex.pop(0)()
        for r in Rd: a.lds(r, 'f')
        for f in ex: f()

    dma_x(0, 0); dma_x(0, 1); dma_w(0); dma_w(1); dma_x(1, 0); dma_x(1, 1); dma_w(2)
    yield 'setup'
    for s in range(NSTEP):
        need = lambda t, s=s: (t[0] == 'w' and t[1] <= s) or (t[0] == 'x' and t[1] <= s >> 1)
        a.wait(vm=need, lg='all')
        a("s_barrier")
        if s == 0: a("; @mark 0")
        if s == 4: a("; @mark 1")
        if s == 10: a("; @mark 2")
        if s == 19: a("; @mark 3")
        nul = lambda: None
        pre = [nul]*4
        if s + 3 < NSTEP: pre[0:3] = [lambda s=s, j=j: dma_w1(s + 3, j) for j in range(3)]
        bx = (s + 4) >> 1
        if bx < NSTEP // 2: pre[3] = lambda s=s, bx=bx: dma_x(bx, s & 1)
        if s == 0:
            for r in reads(0, 0): a.lds(r, 'f')
            for f in pre[:2]: f()
        else:
            block(mfmas(1, False), reads(s, 0), pre[:2])
        a.wait(lg='all')
        block(mfmas(0, s == 0), reads(s, 1), pre[2:])
    a.wait(lg='all')
    for m in mfmas(1, False): a(m)
    a("; @mark 4")

def lane_bits(a, R):
    vL, vT = R['vL'], R['vT']
    a(f"v_and_b32 {vr(vL)}, 63, v0")

def emit_k1(name, st="", ):
    a = Asm()
    a.raw(f".globl {name}\n.p2align 8\n.type {name},@function\n{name}:")
    a("s_cmp_ge_u32 s2, 256")
    a(f"s_cbranch_scc1 {name}_end")
    a(f"s_load_dwordx16 s[4:19], s[0:1], 0")
    a(f"s_load_dwordx2 s[{sWS}:{sWS+1}], s[0:1], 80")
    rg = Regs(1, 256)
    R = {}
    vL = rg.alloc('vL'); R['vL'] = vL
    vT = rg.alloc('vT', 8); R['vT'] = vT
    R['vWo'] = rg.alloc('vWo', 3); R['vXo'] = rg.alloc('vXo', 2)
    R['aX'] = rg.alloc('aX', 4); R['aW'] = rg.alloc('aW', 10)
    R['fx'] = [rg.alloc('fx0', 8, 4), rg.alloc('fx1', 8, 4)]
    R['fw'] = [rg.alloc('fw0', 20, 4), rg.alloc('fw1', 20, 4)]
    R['acc'] = rg.alloc('acc', 96, 4)
    nv = rg.n
    vWo, vXo, aX, aW, acc = R['vWo'], R['vXo'], R['aX'], R['aW'], R['acc']
    T = [vT + i for i in range(8)]
    a(f"v_lshrrev_b32 {vr(T[0])}, 6, v0")
    a(f"v_and_b32 {vr(vL)}, 63, v0")
    a(f"v_readfirstlane_b32 s{sWAVE}, {vr(T[0])}")
    a(f"s_and_b32 s{sXCD}, s2, 7")
    a(f"s_lshr_b32 s{sSLOT}, s2, 3")
    a(f"s_cmp_ge_u32 s{sSLOT}, 30")
    a(f"s_cbranch_scc1 {name}_misc")
    a(f"s_and_b32 s{sT0}, s{sXCD}, 3")
    a(f"s_mul_i32 s{sT0}, s{sT0}, 30")
    a(f"s_add_u32 s{sT0}, s{sT0}, s{sSLOT}")
    a(f"s_lshr_b32 s{sCOL}, s{sT0}, 3")
    a(f"s_and_b32 s{sT0}, s{sT0}, 7")
    a(f"s_lshr_b32 s{sRB}, s{sXCD}, 2")
    a(f"s_lshl_b32 s{sRB}, s{sRB}, 3")
    a(f"s_add_u32 s{sRB}, s{sRB}, s{sT0}")
    a(f"s_lshl_b32 s{sXW}, s{sWAVE}, 11")
    a(f"s_mul_i32 s{sWW}, s{sWAVE}, 3072")
    a(f"s_lshl_b32 s{sT0}, s{sRB}, 7")
    a(f"s_lshl_b32 s{sT1}, s{sWAVE}, 4")
    a(f"s_add_u32 s{sT0}, s{sT0}, s{sT1}")
    a(f"s_mul_i32 s{sT0}, s{sT0}, 1280")
    a(f"v_lshrrev_b32 {vr(T[0])}, 3, {vr(vL)}")
    a(f"v_mul_u32_u24 {vr(T[0])}, 1280, {vr(T[0])}")
    a(f"v_add_u32 {vr(T[0])}, s{sT0}, {vr(T[0])}")
    a(f"v_lshrrev_b32 {vr(T[1])}, 4, {vr(vL)}")
    a(f"v_and_b32 {vr(T[2])}, 7, {vr(vL)}")
    a(f"v_xor_b32 {vr(T[1])}, {vr(T[1])}, {vr(T[2])}")
    a(f"v_lshl_add_u32 {vr(vXo)}, {vr(T[1])}, 4, {vr(T[0])}")
    a(f"v_xor_b32 {vr(T[1])}, 4, {vr(T[1])}")
    a(f"v_lshl_add_u32 {vr(vXo+1)}, {vr(T[1])}, 4, {vr(T[0])}")
    a(f"v_add_u32 {vr(vXo+1)}, {8*1280}, {vr(vXo+1)}")
    a(f"s_cmp_ge_u32 s{sCOL}, 6")
    a(f"s_cbranch_scc1 {name}_gu")

    def ds_x_addr(tokmul_shift, wm_s):
        a(f"v_and_b32 {vr(T[0])}, 31, {vr(vL)}")
        a(f"v_lshrrev_b32 {vr(T[1])}, 5, {vr(vL)}")
        a(f"v_bfe_u32 {vr(T[2])}, {vr(vL)}, 1, 3")
        a(f"v_xor_b32 {vr(T[1])}, {vr(T[1])}, {vr(T[2])}")
        a(f"s_lshl_b32 s{sT0}, s{wm_s}, {tokmul_shift + 7}")
        a(f"s_add_u32 s{sT0}, s{sT0}, {XRING}")
        a(f"v_lshl_add_u32 {vr(T[0])}, {vr(T[0])}, 7, s{sT0}")
        for e in range(4):
            a(f"v_xor_b32 {vr(T[2])}, {2*e}, {vr(T[1])}")
            a(f"v_lshl_add_u32 {vr(aX+e)}, {vr(T[2])}, 4, {vr(T[0])}")

    for j in range(3):
        a(f"s_mul_i32 s{sT0}, s{sWAVE}, 192")
        a(f"s_add_u32 s{sT0}, s{sT0}, {64*j}")
        a(f"v_add_u32 {vr(T[0])}, s{sT0}, {vr(vL)}")
        a(f"v_mul_u32_u24 {vr(T[1])}, 1639, {vr(T[0])}")
        a(f"v_lshrrev_b32 {vr(T[1])}, 16, {vr(T[1])}")
        a(f"v_mul_u32_u24 {vr(T[2])}, 40, {vr(T[1])}")
        a(f"v_sub_u32 {vr(T[2])}, {vr(T[0])}, {vr(T[2])}")
        a(f"v_bfe_u32 {vr(T[3])}, {vr(T[1])}, 1, 1")
        a(f"v_lshlrev_b32 {vr(T[3])}, 2, {vr(T[3])}")
        a(f"v_xor_b32 {vr(T[2])}, {vr(T[2])}, {vr(T[3])}")
        a(f"v_mul_u32_u24 {vr(T[1])}, 3840, {vr(T[1])}")
        a(f"v_lshl_add_u32 {vr(T[1])}, {vr(T[2])}, 4, {vr(T[1])}")
        a(f"s_mul_i32 s{sT0}, s{sCOL}, 640")
        a(f"s_sub_u32 s{sT0}, s{sT0}, {1024*j}")
        a(f"v_add_u32 {vr(T[1])}, s{sT0}, {vr(T[1])}")
        a(f"v_cmp_gt_u32 vcc, 1280, {vr(T[0])}")
        a(f"v_mov_b32 {vr(T[2])}, {OOB}")
        a("s_nop 0")
        a(f"v_cndmask_b32 {vr(vWo+j)}, {vr(T[2])}, {vr(T[1])}, vcc")
    a("s_waitcnt lgkmcnt(0)")
    srd(a, dX, sXP, S*D*2)
    srd(a, dW, sWQ, D*3*D*2)
    srd(a, dWS, sWS, WS_SIZE)
    a(f"s_cmp_ge_u32 s{sCOL}, 4")
    a(f"s_cbranch_scc1 {name}_v")

    sWM, sWN = sB0, sB1
    def qkv_setup(kind):
        a(f"s_and_b32 s{sWM}, s{sWAVE}, 3")
        a(f"s_lshr_b32 s{sWN}, s{sWAVE}, 2")
        ds_x_addr(5, sWM)
        a(f"v_lshrrev_b32 {vr(T[0])}, 5, {vr(vL)}")
        a(f"v_bfe_u32 {vr(T[1])}, {vr(vL)}, 2, 2")
        a(f"v_lshl_add_u32 {vr(T[0])}, {vr(T[0])}, 3, {vr(T[1])}")
        a(f"v_mul_u32_u24 {vr(T[0])}, 640, {vr(T[0])}")
        a(f"v_lshrrev_b32 {vr(T[1])}, 1, {vr(T[1])}")
        a(f"v_bfe_u32 {vr(T[2])}, {vr(vL)}, 4, 1")
        a(f"v_and_b32 {vr(T[3])}, 3, {vr(vL)}")
        a(f"v_lshl_add_u32 {vr(T[2])}, {vr(T[2])}, 2, {vr(T[3])}")
        if kind == 'qk':
            a(f"v_lshlrev_b32 {vr(T[2])}, 2, {vr(T[2])}")
        a(f"s_mul_i32 s{sT0}, s{sWN}, 5")
        for t in range(5):
            a(f"s_add_u32 s{sT1}, s{sT0}, {t}")
            a(f"v_xor_b32 {vr(T[3])}, s{sT1}, {vr(T[1])}")
            a(f"v_lshl_add_u32 {vr(T[3])}, {vr(T[3])}, 6, {vr(T[0])}")
            if kind == 'qk':
                a(f"s_mov_b32 s{sT2}, {lut(t):#x}")
                a(f"v_bfe_u32 {vr(T[4])}, s{sT2}, {vr(T[2])}, 3")
                a(f"v_lshl_add_u32 {vr(aW+t)}, {vr(T[4])}, 3, {vr(T[3])}")
            else:
                a(f"v_lshl_add_u32 {vr(aW+t)}, {vr(T[2])}, 3, {vr(T[3])}")
            a(f"v_add_u32 {vr(aW+5+t)}, 49152, {vr(aW+t)}")

    g = gemm_main(a, 'qk', R); next(g); qkv_setup('qk')
    for _ in g: pass
    a(f"s_and_b32 s{sT0}, s{sCOL}, 1")
    a(f"s_lshl_b32 s{sT0}, s{sT0}, 1")
    a(f"s_add_u32 s{sT0}, s{sT0}, s{sWN}")
    a(f"s_mul_i32 s{sT0}, s{sT0}, {8*81920}")
    a(f"s_lshl_b32 s{sT1}, s{sRB}, 2")
    a(f"s_add_u32 s{sT1}, s{sT1}, s{sWM}")
    a(f"s_mul_i32 s{sT1}, s{sT1}, 1280")
    a(f"s_add_u32 s{sT0}, s{sT0}, s{sT1}")
    a(f"s_cmp_ge_u32 s{sCOL}, 2")
    a(f"s_cselect_b32 s{sT1}, {KF}, {QF}")
    a(f"s_cselect_b32 s{sC0}, 1.0, {f2u(QSCALE):#x}")
    a(f"s_mov_b32 s{sC0+1}, s{sC0}")
    a(f"s_add_u32 s{sT0}, s{sT0}, s{sT1}")
    a(f"v_lshlrev_b32 {vr(T[0])}, 4, {vr(vL)}")
    a(f"v_and_b32 {vr(T[1])}, 31, {vr(vL)}")
    a(f"v_lshlrev_b32 {vr(T[1])}, 3, {vr(T[1])}")
    a(f"v_lshrrev_b32 {vr(T[2])}, 5, {vr(vL)}")
    a(f"v_mul_u32_u24 {vr(T[2])}, 81920, {vr(T[2])}")
    a(f"v_add_u32 {vr(T[1])}, {vr(T[1])}, {vr(T[2])}")
    a.nop(6)
    pk = R['fw'][0]
    def scale_pack(slot, dst):
        b = acc + 4*slot
        a(f"v_pk_mul_f32 {vr(b,2)}, {vr(b,2)}, {sr(sC0,2)}")
        a(f"v_pk_mul_f32 {vr(b+2,2)}, {vr(b+2,2)}, {sr(sC0,2)}")
        a(f"v_cvt_pk_bf16_f32 {vr(dst)}, {vr(b)}, {vr(b+1)}")
        a(f"v_cvt_pk_bf16_f32 {vr(dst+1)}, {vr(b+2)}, {vr(b+3)}")
    for h in range(8):
        d = pk + 4*h
        scale_pack(UNIT_PAIRS[h][0], d); scale_pack(UNIT_PAIRS[h][1], d+2)
        a(f"s_add_u32 s{sT1}, s{sT0}, {h*81920}")
        a.vmem(f"buffer_store_dwordx4 {vr(d,4)}, {vr(T[0])}, {sr(dWS,4)}, s{sT1} offen{st}", 'st')
        if h & 1:
            d2 = pk + 32 + 2*(h >> 1)
            scale_pack(R_SLOTS[h >> 1], d2)
            a(f"s_add_u32 s{sT2}, s{sT0}, {(h-1)*81920}")
            a.vmem(f"buffer_store_dwordx2 {vr(d2,2)}, {vr(T[1])}, {sr(dWS,4)}, s{sT2} offen offset:1024{st}", 'st')
    a("s_endpgm")
    a.vm = []; a.lg = []

    a.label(f"{name}_v")
    g = gemm_main(a, 'v', R); next(g); qkv_setup('v')
    for _ in g: pass
    a(f"s_and_b32 s{sT0}, s{sCOL}, 1")
    a(f"s_lshl_b32 s{sT0}, s{sT0}, 1")
    a(f"s_add_u32 s{sT0}, s{sT0}, s{sWN}")
    a(f"s_mul_i32 s{sT0}, s{sT0}, {8*86016}")
    a(f"s_lshl_b32 s{sT1}, s{sRB}, 2")
    a(f"s_add_u32 s{sT1}, s{sT1}, s{sWM}")
    a(f"s_mul_i32 s{sT1}, s{sT1}, 1344")
    a(f"s_add_u32 s{sT0}, s{sT0}, s{sT1}")
    a(f"s_add_u32 s{sT0}, s{sT0}, {VF}")
    a(f"v_bfe_u32 {vr(T[0])}, {vr(vL)}, 2, 3")
    a(f"v_mul_u32_u24 {vr(T[0])}, 86016, {vr(T[0])}")
    a(f"v_and_b32 {vr(T[1])}, 3, {vr(vL)}")
    a(f"v_mul_u32_u24 {vr(T[1])}, 336, {vr(T[1])}")
    a(f"v_add_u32 {vr(T[0])}, {vr(T[0])}, {vr(T[1])}")
    for i in range(4):
        a(f"v_mov_b32 {vr(pk+i)}, 0x3f803f80")
    a.vmem(f"buffer_store_dwordx4 {vr(pk,4)}, {vr(T[0])}, {sr(dWS,4)}, s{sT0} offen offset:320{st}", 'st')
    a(f"v_and_b32 {vr(T[1])}, 31, {vr(vL)}")
    a(f"v_lshrrev_b32 {vr(T[2])}, 5, {vr(vL)}")
    a(f"v_mul_u32_u24 {vr(T[2])}, 336, {vr(T[2])}")
    for t in range(5):
        a(f"v_add_u32 {vr(T[3])}, {32*t}, {vr(T[1])}")
        a(f"v_mul_u32_u24 {vr(T[4])}, 3277, {vr(T[3])}")
        a(f"v_lshrrev_b32 {vr(T[4])}, 16, {vr(T[4])}")
        a(f"v_mul_u32_u24 {vr(T[5])}, 20, {vr(T[4])}")
        a(f"v_sub_u32 {vr(T[3])}, {vr(T[3])}, {vr(T[5])}")
        a(f"v_mul_u32_u24 {vr(T[4])}, 86016, {vr(T[4])}")
        a(f"v_lshl_add_u32 {vr(T[3])}, {vr(T[3])}, 4, {vr(T[4])}")
        a(f"v_add_u32 {vr(aW+t)}, {vr(T[3])}, {vr(T[2])}")
    for t in range(5):
        for p in range(2):
            d = pk + 4 + 4*((2*t + p) % 8)
            b = acc + 16*t + 8*p
            for i in range(4):
                a(f"v_cvt_pk_bf16_f32 {vr(d+i)}, {vr(b+2*i)}, {vr(b+2*i+1)}")
            a.vmem(f"buffer_store_dwordx4 {vr(d,4)}, {vr(aW+t)}, {sr(dWS,4)}, s{sT0} offen offset:{672*p}{st}", 'st')
    a("s_endpgm")
    a.vm = []; a.lg = []

    a.label(f"{name}_gu")
    sM = sT3
    a(f"s_lshr_b32 s{sM}, s{sWAVE}, 2")
    for j in range(3):
        a(f"s_and_b32 s{sT0}, s{sWAVE}, 3")
        a(f"s_mul_i32 s{sT0}, s{sT0}, 192")
        a(f"s_add_u32 s{sT0}, s{sT0}, {64*j}")
        a(f"v_add_u32 {vr(T[0])}, s{sT0}, {vr(vL)}")
        a(f"v_mul_u32_u24 {vr(T[1])}, 2731, {vr(T[0])}")
        a(f"v_lshrrev_b32 {vr(T[1])}, 16, {vr(T[1])}")
        a(f"v_mul_u32_u24 {vr(T[2])}, 24, {vr(T[1])}")
        a(f"v_sub_u32 {vr(T[2])}, {vr(T[0])}, {vr(T[2])}")
        a(f"v_and_b32 {vr(T[3])}, 2, {vr(T[1])}")
        a(f"s_lshl_b32 s{sT1}, s{sM}, 2")
        a(f"v_or_b32 {vr(T[3])}, s{sT1}, {vr(T[3])}")
        a(f"v_xor_b32 {vr(T[2])}, {vr(T[2])}, {vr(T[3])}")
        a(f"v_mul_u32_u24 {vr(T[1])}, 3456, {vr(T[1])}")
        a(f"v_lshl_add_u32 {vr(T[1])}, {vr(T[2])}, 4, {vr(T[1])}")
        a(f"s_sub_u32 s{sT0}, s{sCOL}, 6")
        a(f"s_mul_i32 s{sT0}, s{sT0}, 384")
        a(f"s_sub_u32 s{sT0}, s{sT0}, {1024*j}")
        a(f"v_add_u32 {vr(vWo+j)}, s{sT0}, {vr(T[1])}")
    a("s_waitcnt lgkmcnt(0)")
    srd(a, dX, sXP, S*D*2)
    a(f"s_cmp_eq_u32 s{sM}, 0")
    a(f"s_cselect_b32 s{dW}, s{sWG}, s{sWU}")
    a(f"s_cselect_b32 s{dW+1}, s{sWG+1}, s{sWU+1}")
    a(f"s_mov_b32 s{dW+2}, {D*F*2}")
    a(f"s_mov_b32 s{dW+3}, 0x00020000")
    srd(a, dWS, sWS, WS_SIZE)
    g = gemm_main(a, 'gu', R); next(g)
    a(f"s_and_b32 s{sWM}, s{sWAVE}, 1")
    a(f"s_lshr_b32 s{sWN}, s{sWAVE}, 1")
    ds_x_addr(6, sWM)
    a(f"v_lshrrev_b32 {vr(T[0])}, 5, {vr(vL)}")
    a(f"v_bfe_u32 {vr(T[1])}, {vr(vL)}, 2, 2")
    a(f"v_lshl_add_u32 {vr(T[0])}, {vr(T[0])}, 3, {vr(T[1])}")
    a(f"v_mul_u32_u24 {vr(T[0])}, 384, {vr(T[0])}")
    a(f"v_bfe_u32 {vr(T[2])}, {vr(vL)}, 1, 1")
    a(f"v_mul_u32_u24 {vr(T[3])}, 12288, {vr(T[2])}")
    a(f"v_add_u32 {vr(T[0])}, {vr(T[0])}, {vr(T[3])}")
    a(f"v_lshrrev_b32 {vr(T[1])}, 1, {vr(T[1])}")
    a(f"v_lshl_add_u32 {vr(T[1])}, {vr(T[2])}, 1, {vr(T[1])}")
    a(f"v_bfe_u32 {vr(T[2])}, {vr(vL)}, 4, 1")
    a(f"v_lshl_add_u32 {vr(T[0])}, {vr(T[2])}, 4, {vr(T[0])}")
    a(f"v_and_b32 {vr(T[2])}, 1, {vr(vL)}")
    a(f"v_lshl_add_u32 {vr(T[0])}, {vr(T[2])}, 3, {vr(T[0])}")
    a(f"s_mul_i32 s{sT0}, s{sWN}, 3")
    for t in range(3):
        a(f"s_add_u32 s{sT1}, s{sT0}, {t}")
        a(f"v_xor_b32 {vr(T[3])}, s{sT1}, {vr(T[1])}")
        a(f"v_lshl_add_u32 {vr(aW+t)}, {vr(T[3])}, 5, {vr(T[0])}")
        a(f"v_add_u32 {vr(aW+3+t)}, 49152, {vr(aW+t)}")
    for _ in g: pass
    a(f"s_lshl_b32 s{sT0}, s{sRB}, 1")
    a(f"s_add_u32 s{sT0}, s{sT0}, s{sWM}")
    a(f"s_mul_i32 s{sT0}, s{sT0}, {2*108}")
    a(f"s_sub_u32 s{sT1}, s{sCOL}, 6")
    a(f"s_mul_i32 s{sT1}, s{sT1}, 12")
    a(f"s_add_u32 s{sT0}, s{sT0}, s{sT1}")
    a(f"s_mul_i32 s{sT1}, s{sWN}, 3")
    a(f"s_add_u32 s{sT0}, s{sT0}, s{sT1}")
    a(f"s_lshl_b32 s{sT0}, s{sT0}, 10")
    a(f"s_add_u32 s{sT0}, s{sT0}, {HF}")
    a(f"s_add_u32 s{sT1}, s{sT0}, {108*1024}")
    a(f"s_mov_b32 s{sC0}, {f2u(-math.log2(math.e)):#x}")
    a(f"s_mov_b32 s{sC0+1}, s{sC0}")
    a(f"s_mov_b32 s{sC1}, 1.0")
    a(f"s_mov_b32 s{sC1+1}, 1.0")
    a(f"v_lshlrev_b32 {vr(T[0])}, 4, {vr(vL)}")
    order = [(tt, t) for t in range(3) for tt in range(2)]
    for n, (tt, t) in enumerate(order):
        b = acc + 16*(tt*3 + t)
        d = pk + 4*n
        gs = [b, b+2, b+8, b+10]; us = [b+4, b+6, b+12, b+14]
        for q in gs: a(f"v_pk_mul_f32 {vr(q,2)}, {vr(q,2)}, {sr(sC0,2)}")
        for q in gs:
            a(f"v_exp_f32 {vr(q)}, {vr(q)}"); a(f"v_exp_f32 {vr(q+1)}, {vr(q+1)}")
        for q in gs: a(f"v_pk_add_f32 {vr(q,2)}, {vr(q,2)}, {sr(sC1,2)}")
        for q in gs:
            a(f"v_rcp_f32 {vr(q)}, {vr(q)}"); a(f"v_rcp_f32 {vr(q+1)}, {vr(q+1)}")
        for q, u in zip(gs, us): a(f"v_pk_mul_f32 {vr(q,2)}, {vr(q,2)}, {vr(u,2)}")
        for i, q in enumerate(gs): a(f"v_cvt_pk_bf16_f32 {vr(d+i)}, {vr(q)}, {vr(q+1)}")
        a.vmem(f"buffer_store_dwordx4 {vr(d,4)}, {vr(T[0])}, {sr(dWS,4)}, s{sT1 if tt else sT0} offen offset:{1024*t}{st}", 'st')
    a("s_endpgm")
    a.vm = []; a.lg = []

    a.label(f"{name}_misc")
    sU, sUE = sB0, sB1
    dG = 56
    a(f"s_lshl_b32 s{sT0}, s{sXCD}, 1")
    a(f"s_add_u32 s{sT0}, s{sT0}, s{sSLOT}")
    a(f"s_sub_u32 s{sT0}, s{sT0}, 30")
    a(f"s_lshl_b32 s{sT0}, s{sT0}, 3")
    a(f"s_add_u32 s{sU}, s{sT0}, s{sWAVE}")
    a("s_waitcnt lgkmcnt(0)")
    srd(a, dX, sXP, S*D*2)
    srd(a, dWS, sWS, WS_SIZE)
    srd(a, dG, sGW, D*2)
    gw = acc; xr = acc + 20
    a(f"v_and_b32 {vr(T[0])}, 15, {vr(vL)}")
    a(f"v_lshlrev_b32 {vr(T[0])}, 4, {vr(T[0])}")
    for i in range(5):
        a.vmem(f"buffer_load_dwordx4 {vr(gw+4*i,4)}, {vr(T[0])}, {sr(dG,4)}, 0 offen offset:{256*i}", 'gw')
    a(f"v_lshrrev_b32 {vr(T[1])}, 4, {vr(vL)}")
    a(f"v_mul_u32_u24 {vr(T[2])}, 1280, {vr(T[1])}")
    a(f"v_add_u32 {vr(T[0])}, {vr(T[0])}, {vr(T[2])}")
    xregs = [acc + 20, acc + 40, acc + 60, R['fw'][0]]
    for q in range(4):
        a(f"s_lshl_b32 s{sT0}, s{sU}, 4")
        a(f"s_add_u32 s{sT0}, s{sT0}, {4*q}")
        a(f"s_mul_i32 s{sT0}, s{sT0}, 1280")
        for i in range(5):
            a.vmem(f"buffer_load_dwordx4 {vr(xregs[q]+4*i,4)}, {vr(T[0])}, {sr(dX,4)}, s{sT0} offen offset:{256*i}", ('gx', q))
    vA = R['fw'][1]
    for i in range(10):
        a(f"v_add_u32 {vr(T[2])}, {64*i}, {vr(vL)}")
        a(f"v_mul_u32_u24 {vr(T[3])}, 1639, {vr(T[2])}")
        a(f"v_lshrrev_b32 {vr(T[3])}, 16, {vr(T[3])}")
        a(f"v_mul_u32_u24 {vr(T[4])}, 40, {vr(T[3])}")
        a(f"v_sub_u32 {vr(T[4])}, {vr(T[2])}, {vr(T[4])}")
        a(f"v_and_b32 {vr(T[5])}, 2, {vr(T[3])}")
        a(f"v_lshlrev_b32 {vr(T[5])}, 1, {vr(T[5])}")
        a(f"v_xor_b32 {vr(T[4])}, {vr(T[4])}, {vr(T[5])}")
        a(f"v_lshlrev_b32 {vr(T[4])}, 4, {vr(T[4])}")
        a(f"v_mul_u32_u24 {vr(T[5])}, 1280, {vr(T[3])}")
        a(f"v_add_u32 {vr(vA+i)}, {vr(T[5])}, {vr(T[4])}")
        a(f"v_lshrrev_b32 {vr(T[5])}, 2, {vr(T[3])}")
        a(f"v_mul_u32_u24 {vr(T[5])}, {16*1280}, {vr(T[5])}")
        a(f"v_add_u32 {vr(vA+10+i)}, {vr(vA+i)}, {vr(T[5])}")
    aR = aX
    a(f"v_lshrrev_b32 {vr(T[2])}, 5, {vr(vL)}")
    a(f"v_bfe_u32 {vr(T[3])}, {vr(vL)}, 2, 2")
    a(f"v_lshl_add_u32 {vr(T[2])}, {vr(T[2])}, 2, {vr(T[3])}")
    a(f"v_mul_u32_u24 {vr(T[2])}, 640, {vr(T[2])}")
    a(f"v_bfe_u32 {vr(T[4])}, {vr(vL)}, 4, 1")
    a(f"v_and_b32 {vr(T[5])}, 3, {vr(vL)}")
    a(f"v_lshl_add_u32 {vr(T[4])}, {vr(T[4])}, 2, {vr(T[5])}")
    a(f"v_lshl_add_u32 {vr(T[2])}, {vr(T[4])}, 3, {vr(T[2])}")
    a(f"s_mul_i32 s{sWW}, s{sWAVE}, 10240")
    a(f"v_add_u32 {vr(T[2])}, s{sWW}, {vr(T[2])}")
    a(f"v_lshrrev_b32 {vr(T[3])}, 1, {vr(T[3])}")
    a(f"v_lshl_add_u32 {vr(aR)}, {vr(T[3])}, 6, {vr(T[2])}")
    a(f"v_xor_b32 {vr(T[3])}, 1, {vr(T[3])}")
    a(f"v_lshl_add_u32 {vr(aR+1)}, {vr(T[3])}, 6, {vr(T[2])}")
    a(f"v_lshlrev_b32 {vr(aR+2)}, 4, {vr(vL)}")
    for q in range(4):
        a.wait(vm=('gx', q))
        z = T[4 + q] if q < 4 else None
        a(f"v_mov_b32 {vr(z)}, 0")
        for i in range(20):
            a(f"v_dot2_f32_bf16 {vr(z)}, {vr(xregs[q]+i)}, {vr(gw+i)}, {vr(z)}")
    a.nop(3)
    for sh in ("row_ror:8", "row_ror:4", "row_ror:2", "row_ror:1"):
        for q in range(4):
            z = T[4 + q]
            a(f"v_add_f32_dpp {vr(z)}, {vr(z)}, {vr(z)} {sh} row_mask:0xf bank_mask:0xf")
    a(f"v_and_b32 {vr(T[2])}, 15, {vr(vL)}")
    for q in range(1, 4):
        a(f"v_cmp_eq_u32 vcc, {q}, {vr(T[2])}")
        a("s_nop 1")
        a(f"v_cndmask_b32 {vr(T[4])}, {vr(T[4])}, {vr(T[4+q])}, vcc")
    a(f"v_mul_f32 {vr(T[4])}, {f2u(-math.log2(math.e)):#x}, {vr(T[4])}")
    a(f"v_exp_f32 {vr(T[4])}, {vr(T[4])}")
    a("s_nop 0")
    a(f"v_add_f32 {vr(T[4])}, 1.0, {vr(T[4])}")
    a(f"v_rcp_f32 {vr(T[4])}, {vr(T[4])}")
    a(f"v_lshl_add_u32 {vr(T[3])}, {vr(T[2])}, 2, {vr(T[1])}")
    a(f"v_lshlrev_b32 {vr(T[3])}, 2, {vr(T[3])}")
    a(f"v_cmp_gt_u32 vcc, 4, {vr(T[2])}")
    a(f"v_mov_b32 {vr(T[5])}, {OOB}")
    a("s_nop 0")
    a(f"v_cndmask_b32 {vr(T[3])}, {vr(T[5])}, {vr(T[3])}, vcc")
    a(f"s_lshl_b32 s{sT0}, s{sU}, 6")
    a(f"s_add_u32 s{sT0}, s{sT0}, {GG}")
    a(f"buffer_store_dword {vr(T[4])}, {vr(T[3])}, {sr(dWS,4)}, s{sT0} offen{st}")
    sKS, sHF, sSRC, sDST, sDS2 = 60, 61, 62, 63, 64
    a.label(f"{name}_unit")
    a.vm = []; a.lg = []
    a(f"s_lshr_b32 s{sKS}, s{sU}, 1")
    a(f"s_and_b32 s{sHF}, s{sU}, 1")
    a(f"s_cmp_ge_u32 s{sKS}, 108")
    a(f"s_cbranch_scc1 {name}_unit_wo")
    srd(a, dW, sWD, F*D*2)
    a(f"s_mul_i32 s{sSRC}, s{sKS}, {16*1280}")
    a(f"s_mul_i32 s{sDST}, s{sHF}, {10*110592}")
    a(f"s_lshl_b32 s{sT0}, s{sKS}, 10")
    a(f"s_add_u32 s{sDST}, s{sDST}, s{sT0}")
    a(f"s_add_u32 s{sDST}, s{sDST}, {WDF}")
    a(f"s_mov_b32 s{sDS2}, 110592")
    a(f"s_branch {name}_unit_plain")
    a.label(f"{name}_unit_wo")
    srd(a, dW, sWO, D*D*2)
    a(f"s_sub_u32 s{sKS}, s{sKS}, 108")
    a(f"s_mul_i32 s{sDST}, s{sHF}, {10*40960}")
    a(f"s_lshl_b32 s{sT0}, s{sKS}, 10")
    a(f"s_add_u32 s{sDST}, s{sDST}, s{sT0}")
    a(f"s_add_u32 s{sDST}, s{sDST}, {WOF}")
    a(f"s_mov_b32 s{sDS2}, 40960")
    a(f"s_mul_i32 s{sSRC}, s{sKS}, {20*1280}")
    a(f"s_cmp_lt_u32 s{sKS}, 32")
    a(f"s_cbranch_scc1 {name}_unit_plain")
    a(f"s_sub_u32 s{sKS}, s{sKS}, 32")
    a(f"s_mul_i32 s{sSRC}, s{sKS}, {80*1280}")
    a(f"s_add_u32 s{sSRC}, s{sSRC}, {16*1280}")
    def unit_dma(base):
        a(f"s_mul_i32 s{sT0}, s{sHF}, 640")
        a(f"s_add_u32 s{sSRC}, s{sSRC}, s{sT0}")
        for i in range(10):
            a(f"s_add_u32 m0, s{sWW}, {1024*i}")
            a("s_nop 0")
            a(f"buffer_load_dwordx4 {vr(base+i)}, {sr(dW,4)}, s{sSRC} offen lds")
    unit_dma(vA + 10)
    a(f"s_branch {name}_unit_go")
    a.label(f"{name}_unit_plain")
    unit_dma(vA)
    a.label(f"{name}_unit_go")
    a("s_waitcnt vmcnt(0)")
    fr = acc
    for n in range(10):
        for u in range(2):
            a.lds(f"ds_read_b64_tr_b16 {vr(fr+4*n+2*u,2)}, {vr(aR + (n & 1))} offset:{128*(n >> 1) + u*8*640}", n)
        if n >= 4:
            a.wait(lg=n-4)
            a(f"buffer_store_dwordx4 {vr(fr+4*(n-4),4)}, {vr(aR+2)}, {sr(dWS,4)}, s{sDST} offen{st}")
            a(f"s_add_u32 s{sDST}, s{sDST}, s{sDS2}")
    for n in range(6, 10):
        a.wait(lg=n)
        a(f"buffer_store_dwordx4 {vr(fr+4*n,4)}, {vr(aR+2)}, {sr(dWS,4)}, s{sDST} offen{st}")
        a(f"s_add_u32 s{sDST}, s{sDST}, s{sDS2}")
    a(f"s_add_u32 s{sU}, s{sU}, 128")
    a(f"s_cmp_lt_u32 s{sU}, 296")
    a("s_waitcnt vmcnt(0)")
    a(f"s_cbranch_scc1 {name}_unit")
    a.label(f"{name}_end")
    a("s_endpgm")
    return a.text(), kd(name, nv), K1_LDS
```

```python
from asmlib import *
from common import *

WRING = 0
XRING = 98304
XPOS = [0, 2, 1]
NSTEP = 20
LASTB = 17
OPT = dict(prefetch=True, stagger=True, pf_lead=0)

sXP, sWQ, sWO, sBX, sWG, sWU, sWD, sGW = 4, 6, 8, 10, 12, 14, 16, 18
sWS, sOUT = 20, 22
dX, dW, dWS = 24, 28, 32
sXCD, sSLOT, sWAVE, sCOL, sRB, sT0, sT1, sT2, sT3 = 36, 37, 38, 39, 40, 41, 42, 43, 44
sXW, sWW, sWK = 45, 46, 47
sC0, sC1 = 48, 50
sWM, sWN = 52, 53
sHW = 54
dG = 56
def xslot(b): return XRING + 16384*XPOS[b % 3]

def entry(a, name, vL, vT):
    a("s_cmp_ge_u32 s2, 256")
    a(f"s_cbranch_scc1 {name}_end")
    a(f"s_load_dwordx16 s[4:19], s[0:1], 0")
    a(f"s_load_dwordx2 s[{sWS}:{sWS+1}], s[0:1], 80")
    a(f"s_load_dwordx2 s[{sOUT}:{sOUT+1}], s[0:1], 64")
    a(f"v_lshrrev_b32 {vr(vT)}, 6, v0")
    a(f"v_and_b32 {vr(vL)}, 63, v0")
    a(f"v_readfirstlane_b32 s{sWAVE}, {vr(vT)}")
    a(f"s_and_b32 s{sXCD}, s2, 7")
    a(f"s_lshr_b32 s{sSLOT}, s2, 3")
    a(f"s_and_b32 s{sT0}, s{sXCD}, 3")
    a(f"s_mul_i32 s{sT0}, s{sT0}, 30")
    a(f"s_add_u32 s{sT0}, s{sT0}, s{sSLOT}")
    a(f"s_lshr_b32 s{sCOL}, s{sT0}, 3")
    a(f"s_and_b32 s{sT0}, s{sT0}, 7")
    a(f"s_lshr_b32 s{sRB}, s{sXCD}, 2")
    a(f"s_lshl_b32 s{sRB}, s{sRB}, 3")
    a(f"s_add_u32 s{sRB}, s{sRB}, s{sT0}")

def loader(a, name, vL, T, base, done):
    vWo, vXo = base, base + 6
    a(f"s_sub_u32 s{sHW}, s{sWAVE}, 8")
    a(f"s_lshl_b32 s{sXW}, s{sHW}, 12")
    a(f"s_mul_i32 s{sWW}, s{sHW}, 6144")
    a(f"s_lshl_b32 s{sT0}, s{sRB}, 7")
    a(f"s_lshl_b32 s{sT1}, s{sHW}, 5")
    a(f"s_add_u32 s{sT0}, s{sT0}, s{sT1}")
    a(f"s_mul_i32 s{sT0}, s{sT0}, 1280")
    a(f"v_lshrrev_b32 {vr(T[0])}, 3, {vr(vL)}")
    a(f"v_mul_u32_u24 {vr(T[0])}, 1280, {vr(T[0])}")
    a(f"v_add_u32 {vr(T[0])}, s{sT0}, {vr(T[0])}")
    a(f"v_lshrrev_b32 {vr(T[1])}, 4, {vr(vL)}")
    a(f"v_and_b32 {vr(T[2])}, 7, {vr(vL)}")
    a(f"v_xor_b32 {vr(T[1])}, {vr(T[1])}, {vr(T[2])}")
    a(f"v_lshl_add_u32 {vr(vXo)}, {vr(T[1])}, 4, {vr(T[0])}")
    a(f"v_xor_b32 {vr(T[1])}, 4, {vr(T[1])}")
    a(f"v_lshl_add_u32 {vr(vXo+1)}, {vr(T[1])}, 4, {vr(T[0])}")
    a(f"v_add_u32 {vr(vXo+1)}, {8*1280 - 1024}, {vr(vXo+1)}")
    a(f"v_add_u32 {vr(vXo+2)}, {16*1280}, {vr(vXo)}")
    a(f"v_add_u32 {vr(vXo+3)}, {16*1280}, {vr(vXo+1)}")
    a(f"s_cmp_ge_u32 s{sCOL}, 6")
    a(f"s_cbranch_scc1 {name}_ld_gu")
    for gu in (0, 1):
        pitchG = 3456 if gu else 3840
        if gu: a.label(f"{name}_ld_gu")
        a.vm = []
        def woff(j):
            if gu:
                a(f"s_and_b32 s{sT0}, s{sHW}, 1")
                a(f"s_mul_i32 s{sT0}, s{sT0}, 384")
            else:
                a(f"s_mul_i32 s{sT0}, s{sHW}, 384")
            a(f"s_add_u32 s{sT0}, s{sT0}, {64*j}")
            a(f"v_add_u32 {vr(T[0])}, s{sT0}, {vr(vL)}")
            a(f"v_mul_u32_u24 {vr(T[1])}, {2731 if gu else 1639}, {vr(T[0])}")
            a(f"v_lshrrev_b32 {vr(T[1])}, 16, {vr(T[1])}")
            a(f"v_mul_u32_u24 {vr(T[2])}, {24 if gu else 40}, {vr(T[1])}")
            a(f"v_sub_u32 {vr(T[2])}, {vr(T[0])}, {vr(T[2])}")
            a(f"v_and_b32 {vr(T[3])}, 2, {vr(T[1])}")
            if gu:
                a(f"v_or_b32 {vr(T[3])}, s{sT2}, {vr(T[3])}")
            else:
                a(f"v_lshlrev_b32 {vr(T[3])}, 1, {vr(T[3])}")
            a(f"v_xor_b32 {vr(T[2])}, {vr(T[2])}, {vr(T[3])}")
            a(f"v_mul_u32_u24 {vr(T[1])}, {pitchG}, {vr(T[1])}")
            a(f"v_lshl_add_u32 {vr(T[1])}, {vr(T[2])}, 4, {vr(T[1])}")
            a(f"s_sub_u32 s{sT0}, s{sT3}, {1024*(j % 3)}")
            if gu or j < 2:
                a(f"v_add_u32 {vr(vWo+j)}, s{sT0}, {vr(T[1])}")
            else:
                a(f"v_add_u32 {vr(T[1])}, s{sT0}, {vr(T[1])}")
                a(f"v_cmp_gt_u32 vcc, 1280, {vr(T[0])}")
                a(f"v_mov_b32 {vr(T[2])}, {OOB}")
                a("s_nop 0")
                a(f"v_cndmask_b32 {vr(vWo+j)}, {vr(T[2])}, {vr(T[1])}, vcc")
        def dma_w(s):
            a(f"s_mov_b32 s{sWK}, {s*32*pitchG}")
            for g in range(2):
                a(f"s_add_u32 m0, s{sWW}, {WRING + (s % 4)*24576 + g*3072}")
                a("s_nop 0")
                for j in range(3):
                    a.vmem(f"buffer_load_dwordx4 {vr(vWo+3*g+j)}, {sr(dW,4)}, s{sWK} offen offset:{1024*j} lds", ('w', s))
        def dma_x(b, h):
            a(f"s_add_u32 m0, s{sXW}, {xslot(b) + h*2048 - b*128}")
            a("s_nop 0")
            for j in range(2):
                a.vmem(f"buffer_load_dwordx4 {vr(vXo+2*h+j)}, {sr(dX,4)}, 0 offen offset:{b*128 + 1024*j} lds", ('x', b))
        if gu:
            a(f"s_lshr_b32 s{sT2}, s{sHW}, 1")
            a(f"s_sub_u32 s{sT3}, s{sCOL}, 6")
            a(f"s_mul_i32 s{sT3}, s{sT3}, 384")
        else:
            a(f"s_mul_i32 s{sT3}, s{sCOL}, 640")
        a("s_waitcnt lgkmcnt(0)")
        srd(a, dX, sXP, S*D*2)
        dma_x(0, 0); dma_x(0, 1)
        if gu:
            a(f"s_cmp_eq_u32 s{sT2}, 0")
            a(f"s_cselect_b32 s{dW}, s{sWG}, s{sWU}")
            a(f"s_cselect_b32 s{dW+1}, s{sWG+1}, s{sWU+1}")
            a(f"s_mov_b32 s{dW+2}, {D*F*2}")
            a(f"s_mov_b32 s{dW+3}, 0x00020000")
            a(f"s_lshl_b32 s{sT2}, s{sT2}, 2")
        else:
            srd(a, dW, sWQ, D*3*D*2)
        for j in range(6): woff(j)
        dma_w(0); dma_w(1); dma_x(1, 0); dma_x(1, 1); dma_w(2)
        srd(a, dWS, sWS, WS_SIZE)
        for s in range(LASTB + 1):
            lim = s if s < LASTB else NSTEP
            a.wait(vm=lambda t: (t[0] == 'w' and t[1] <= lim) or (t[0] == 'x' and t[1] <= lim >> 1))
            a("s_barrier")
            if s + 3 < NSTEP: dma_w(s + 3)
            bx = (s + 4) >> 1
            if bx < NSTEP // 2: dma_x(bx, s & 1)
        done()

def compute(a, name, vL, T, base, st, done):
    def ds_x_addr(aX, sh):
        a(f"v_and_b32 {vr(T[0])}, 31, {vr(vL)}")
        a(f"v_lshrrev_b32 {vr(T[1])}, 5, {vr(vL)}")
        a(f"v_bfe_u32 {vr(T[2])}, {vr(vL)}, 1, 3")
        a(f"v_xor_b32 {vr(T[1])}, {vr(T[1])}, {vr(T[2])}")
        a(f"s_lshl_b32 s{sT0}, s{sWM}, {sh + 7}")
        a(f"s_add_u32 s{sT0}, s{sT0}, {XRING}")
        a(f"v_lshl_add_u32 {vr(T[0])}, {vr(T[0])}, 7, s{sT0}")
        for e in range(4):
            a(f"v_xor_b32 {vr(T[2])}, {2*e}, {vr(T[1])}")
            a(f"v_lshl_add_u32 {vr(aX+e)}, {vr(T[2])}, 4, {vr(T[0])}")
    def prefetch_setup(gu, vP):
        nl = 3 if gu else 5
        per = 4*nl
        a(f"v_mul_u32_u24 {vr(T[0])}, {(65536 + per - 1)//per}, {vr(vL)}")
        a(f"v_lshrrev_b32 {vr(T[0])}, 16, {vr(T[0])}")
        a(f"v_mul_u32_u24 {vr(T[1])}, {per}, {vr(T[0])}")
        a(f"v_sub_u32 {vr(T[1])}, {vr(vL)}, {vr(T[1])}")
        a(f"v_mul_u32_u24 {vr(T[2])}, {(65536 + nl - 1)//nl}, {vr(T[1])}")
        a(f"v_lshrrev_b32 {vr(T[2])}, 16, {vr(T[2])}")
        a(f"v_mul_u32_u24 {vr(T[3])}, {nl}, {vr(T[2])}")
        a(f"v_sub_u32 {vr(T[1])}, {vr(T[1])}, {vr(T[3])}")
        a(f"v_lshl_add_u32 {vr(T[0])}, {vr(T[0])}, 5, {vr(T[2])}")
        pitch = 3456 if gu else 3840
        a(f"v_mul_u32_u24 {vr(T[0])}, {pitch}, {vr(T[0])}")
        a(f"v_lshl_add_u32 {vr(T[0])}, {vr(T[1])}, 7, {vr(T[0])}")
        nst = 64 // per
        a(f"v_cmp_gt_u32 vcc, {nst*per}, {vr(vL)}")
        a(f"v_mov_b32 {vr(T[1])}, {OOB}")
        a(f"s_and_b32 s{sT0}, s{sRB}, 7")
        a(f"s_mul_i32 s{sT0}, s{sT0}, {4*pitch}")
        if gu:
            a(f"s_sub_u32 s{sT1}, s{sCOL}, 6")
            a(f"s_mul_i32 s{sT1}, s{sT1}, 384")
            a(f"s_and_b32 s{sT2}, s{sWAVE}, 3")
        else:
            a(f"s_mul_i32 s{sT1}, s{sCOL}, 640")
            a(f"s_mov_b32 s{sT2}, s{sWAVE}")
        a(f"s_add_u32 s{sT0}, s{sT0}, s{sT1}")
        a(f"s_mul_i32 s{sT2}, s{sT2}, {nst*32*pitch}")
        a(f"s_add_u32 s{sT0}, s{sT0}, s{sT2}")
        a(f"s_add_u32 s{sT0}, s{sT0}, {3*32*pitch}")
        a(f"v_add_u32 {vr(T[0])}, s{sT0}, {vr(T[0])}")
        a(f"v_cndmask_b32 {vr(vP)}, {vr(T[1])}, {vr(T[0])}, vcc")
        a(f"s_lshl_b32 s{sT0}, s{sRB}, 2")
        a(f"s_and_b32 s{sT1}, s{sCOL}, 3")
        a(f"s_add_u32 s{sT0}, s{sT0}, s{sT1}")
        a(f"s_mul_i32 s{sT0}, s{sT0}, {32*1280}")
        a(f"s_lshl_b32 s{sT1}, s{sWAVE}, 7")
        a(f"s_add_u32 s{sT0}, s{sT0}, s{sT1}")
        a(f"s_add_u32 s{sT0}, s{sT0}, 256")
        a(f"v_and_b32 {vr(T[0])}, 31, {vr(vL)}")
        a(f"v_mul_u32_u24 {vr(T[0])}, 1280, {vr(T[0])}")
        a(f"v_add_u32 {vr(vP+1)}, s{sT0}, {vr(T[0])}")
        return nst
    def main(kind, R):
        gu = kind == 'gu'
        NT = 2 if gu else 1
        NW = 3 if gu else 5
        pitchL = 384 if gu else 640
        acc, fx, fw, aX, aW, vP = R['acc'], R['fx'], R['fw'], R['aX'], R['aW'], R['vP']
        def reads(s, e1):
            L = []
            b, e = s >> 1, 2*(s & 1) + e1
            for tt in range(NT):
                L.append(f"ds_read_b128 {vr(fx[e1]+4*tt,4)}, {vr(aX+e)} offset:{xslot(b) - XRING + tt*4096}")
            slot = s % 4
            for t in range(NW):
                for u in range(2):
                    L.append(f"ds_read_b64_tr_b16 {vr(fw[e1]+4*t+2*u,2)}, {vr(aW + (slot >> 1)*NW + t)} "
                             f"offset:{(slot & 1)*24576 + (16*e1 + 4*u)*pitchL}")
            return L
        def mfmas(st_, first):
            L = []
            for t in range(NW):
                for tt in range(NT):
                    d = acc + 16*(tt*NW + t)
                    A, B = vr(fw[st_]+4*t, 4), vr(fx[st_]+4*tt, 4)
                    if kind == 'v': A, B = B, A
                    L.append(f"v_mfma_f32_32x32x16_bf16 {vr(d,16)}, {A}, {B}, {'0' if first else vr(d,16)}")
            return L
        def block(M, Rd):
            Rd = list(Rd)
            for m in M:
                a(m)
                for _ in range(2 if gu else 3):
                    if Rd: a.lds(Rd.pop(0), 'f')
            for r in Rd: a.lds(r, 'f')
        if OPT['prefetch']:
            a("s_waitcnt lgkmcnt(0)")
            srd(a, dX, sXP, S*D*2)
            if gu:
                a(f"s_cmp_lt_u32 s{sWAVE}, 4")
                a(f"s_cselect_b32 s{dW}, s{sWG}, s{sWU}")
                a(f"s_cselect_b32 s{dW+1}, s{sWG+1}, s{sWU+1}")
                a(f"s_mov_b32 s{dW+2}, {D*F*2}")
                a(f"s_mov_b32 s{dW+3}, 0x00020000")
            else:
                srd(a, dW, sWQ, D*3*D*2)
        else:
            a("s_waitcnt lgkmcnt(0)")
        srd(a, dWS, sWS, WS_SIZE)
        def pf(s):
            if not OPT['prefetch']: return
            nst = 5 if gu else 3
            lead = OPT['pf_lead']
            ws = [w for w in range(8) if max(0, (3 + nst*(w & 3 if gu else w)) - lead) == s] if lead else (list(range(8)) if s == 0 else [])
            xs = [w for w in range(8) if max(0, 2*(2 + w) - lead) == s] if lead else (list(range(8)) if s == 0 else [])
            for lst, txt in ((ws, f"buffer_load_dword {vr(vP+2)}, {vr(vP)}, {sr(dW,4)}, 0 offen"),
                             (xs, f"buffer_load_dword {vr(vP+2)}, {vr(vP+1)}, {sr(dX,4)}, 0 offen")):
                if len(lst) == 8: a(txt)
                elif lst:
                    lab = f"{name}_pf{kind}{s}{'w' if lst is ws else 'x'}"
                    mask = sum(1 << w for w in lst)
                    a(f"s_lshr_b32 s{sT0}, {mask}, s{sWAVE}")
                    a(f"s_bitcmp1_b32 s{sT0}, 0")
                    a(f"s_cbranch_scc0 {lab}")
                    a(txt)
                    a.label(lab)
        pf(0)
        for s in range(NSTEP):
            a.wait(lg='all')
            if s <= LASTB: a("s_barrier")
            if s == 0: a("; @mark 0")
            if s == 4: a("; @mark 1")
            if s == 10: a("; @mark 2")
            if s == LASTB:
                a("; @mark 3")
                if OPT['stagger']:
                    a(f"s_cmp_ge_u32 s{sWAVE}, 4")
                    a(f"s_cbranch_scc1 {name}_np{kind}")
                    a("s_setprio 1")
                    a.label(f"{name}_np{kind}")
            if s == 0:
                for r in reads(0, 0): a.lds(r, 'f')
            else:
                block(mfmas(1, False), reads(s, 0))
                pf(s)
            a.wait(lg='all')
            block(mfmas(0, s == 0), reads(s, 1))
        a.wait(lg='all')
        for m in mfmas(1, False): a(m)
        a("; @mark 4")

    def regs(gu):
        rg = Regs(base, 168); R = {}
        R['vP'] = rg.alloc('vP', 3)
        R['aX'] = rg.alloc('aX', 4); R['aW'] = rg.alloc('aW', 6 if gu else 10)
        nx, nw = (8, 12) if gu else (4, 20)
        R['fx'] = [rg.alloc('fx0', nx, 2), rg.alloc('fx1', nx, 2)]
        R['fw'] = [rg.alloc('fw0', nw, 2), rg.alloc('fw1', nw, 2)]
        R['acc'] = rg.alloc('acc', 96 if gu else 80, 2)
        return R
    a(f"s_cmp_ge_u32 s{sCOL}, 6")
    a(f"s_cbranch_scc1 {name}_gu")
    R = regs(False)
    aX, aW, acc, pk = R['aX'], R['aW'], R['acc'], R['fw'][0]
    a(f"s_and_b32 s{sWM}, s{sWAVE}, 3")
    a(f"s_lshr_b32 s{sWN}, s{sWAVE}, 2")
    if OPT['prefetch']: prefetch_setup(False, R['vP'])
    ds_x_addr(aX, 5)
    a(f"v_lshrrev_b32 {vr(T[0])}, 5, {vr(vL)}")
    a(f"v_bfe_u32 {vr(T[1])}, {vr(vL)}, 2, 2")
    a(f"v_lshl_add_u32 {vr(T[0])}, {vr(T[0])}, 3, {vr(T[1])}")
    a(f"v_mul_u32_u24 {vr(T[0])}, 640, {vr(T[0])}")
    a(f"v_lshrrev_b32 {vr(T[1])}, 1, {vr(T[1])}")
    a(f"v_bfe_u32 {vr(T[2])}, {vr(vL)}, 4, 1")
    a(f"v_and_b32 {vr(T[3])}, 3, {vr(vL)}")
    a(f"v_lshl_add_u32 {vr(T[2])}, {vr(T[2])}, 2, {vr(T[3])}")
    a(f"v_lshlrev_b32 {vr(T[2])}, 2, {vr(T[2])}")
    a(f"s_mul_i32 s{sT0}, s{sWN}, 5")
    for t in range(5):
        a(f"s_add_u32 s{sT1}, s{sT0}, {t}")
        a(f"v_xor_b32 {vr(T[3])}, s{sT1}, {vr(T[1])}")
        a(f"v_lshl_add_u32 {vr(T[3])}, {vr(T[3])}, 6, {vr(T[0])}")
        a(f"s_cmp_ge_u32 s{sCOL}, 4")
        a(f"s_mov_b32 s{sT2}, {lut(t):#x}")
        a(f"s_cselect_b32 s{sT2}, 0x76543210, s{sT2}")
        a(f"v_bfe_u32 {vr(T[4])}, s{sT2}, {vr(T[2])}, 3")
        a(f"v_lshl_add_u32 {vr(aW+t)}, {vr(T[4])}, 3, {vr(T[3])}")
        a(f"v_add_u32 {vr(aW+5+t)}, 49152, {vr(aW+t)}")
    a(f"s_cbranch_scc1 {name}_v")

    main('qk', R)
    a(f"s_and_b32 s{sT0}, s{sCOL}, 1")
    a(f"s_lshl_b32 s{sT0}, s{sT0}, 1")
    a(f"s_add_u32 s{sT0}, s{sT0}, s{sWN}")
    a(f"s_mul_i32 s{sT0}, s{sT0}, {8*81920}")
    a(f"s_lshl_b32 s{sT1}, s{sRB}, 2")
    a(f"s_add_u32 s{sT1}, s{sT1}, s{sWM}")
    a(f"s_mul_i32 s{sT1}, s{sT1}, 1280")
    a(f"s_add_u32 s{sT0}, s{sT0}, s{sT1}")
    a(f"s_cmp_ge_u32 s{sCOL}, 2")
    a(f"s_cselect_b32 s{sT1}, {KF}, {QF}")
    a(f"s_cselect_b32 s{sC0}, 1.0, {f2u(QSCALE):#x}")
    a(f"s_mov_b32 s{sC0+1}, s{sC0}")
    a(f"s_add_u32 s{sT0}, s{sT0}, s{sT1}")
    a(f"v_lshlrev_b32 {vr(T[0])}, 4, {vr(vL)}")
    a(f"v_and_b32 {vr(T[1])}, 31, {vr(vL)}")
    a(f"v_lshlrev_b32 {vr(T[1])}, 3, {vr(T[1])}")
    a(f"v_lshrrev_b32 {vr(T[2])}, 5, {vr(vL)}")
    a(f"v_mul_u32_u24 {vr(T[2])}, 81920, {vr(T[2])}")
    a(f"v_add_u32 {vr(T[1])}, {vr(T[1])}, {vr(T[2])}")
    def scale_pack(slot, dst):
        b = acc + 4*slot
        a(f"v_pk_mul_f32 {vr(b,2)}, {vr(b,2)}, {sr(sC0,2)}")
        a(f"v_pk_mul_f32 {vr(b+2,2)}, {vr(b+2,2)}, {sr(sC0,2)}")
        a(f"v_cvt_pk_bf16_f32 {vr(dst)}, {vr(b)}, {vr(b+1)}")
        a(f"v_cvt_pk_bf16_f32 {vr(dst+1)}, {vr(b+2)}, {vr(b+3)}")
    for h in range(8):
        d = pk + 4*h
        scale_pack(UNIT_PAIRS[h][0], d); scale_pack(UNIT_PAIRS[h][1], d+2)
        a(f"s_add_u32 s{sT1}, s{sT0}, {h*81920}")
        a(f"buffer_store_dwordx4 {vr(d,4)}, {vr(T[0])}, {sr(dWS,4)}, s{sT1} offen{st}")
        if h & 1:
            d2 = pk + 32 + 2*(h >> 1)
            scale_pack(R_SLOTS[h >> 1], d2)
            a(f"s_add_u32 s{sT2}, s{sT0}, {(h-1)*81920}")
            a(f"buffer_store_dwordx2 {vr(d2,2)}, {vr(T[1])}, {sr(dWS,4)}, s{sT2} offen offset:1024{st}")
    done('qk')

    a.label(f"{name}_v")
    main('v', R)
    a(f"s_and_b32 s{sT0}, s{sCOL}, 1")
    a(f"s_lshl_b32 s{sT0}, s{sT0}, 1")
    a(f"s_add_u32 s{sT0}, s{sT0}, s{sWN}")
    a(f"s_mul_i32 s{sT0}, s{sT0}, {8*VH}")
    a(f"s_lshl_b32 s{sT1}, s{sRB}, 2")
    a(f"s_add_u32 s{sT1}, s{sT1}, s{sWM}")
    a(f"s_mul_i32 s{sT1}, s{sT1}, {VT}")
    a(f"s_add_u32 s{sT0}, s{sT0}, s{sT1}")
    a(f"s_add_u32 s{sT0}, s{sT0}, {VF}")
    if VROWS == 21:
        a(f"v_bfe_u32 {vr(T[0])}, {vr(vL)}, 2, 3")
        a(f"v_mul_u32_u24 {vr(T[0])}, {VH}, {vr(T[0])}")
        a(f"v_and_b32 {vr(T[1])}, 3, {vr(vL)}")
        a(f"v_mul_u32_u24 {vr(T[1])}, 336, {vr(T[1])}")
        a(f"v_add_u32 {vr(T[0])}, {vr(T[0])}, {vr(T[1])}")
        for i in range(4):
            a(f"v_mov_b32 {vr(pk+i)}, 0x3f803f80")
        a(f"buffer_store_dwordx4 {vr(pk,4)}, {vr(T[0])}, {sr(dWS,4)}, s{sT0} offen offset:320{st}")
    a(f"v_and_b32 {vr(T[1])}, 31, {vr(vL)}")
    a(f"v_lshrrev_b32 {vr(T[2])}, 5, {vr(vL)}")
    a(f"v_mul_u32_u24 {vr(T[2])}, {VROWS*16}, {vr(T[2])}")
    for t in range(5):
        a(f"v_add_u32 {vr(T[3])}, {32*t}, {vr(T[1])}")
        a(f"v_mul_u32_u24 {vr(T[4])}, 3277, {vr(T[3])}")
        a(f"v_lshrrev_b32 {vr(T[4])}, 16, {vr(T[4])}")
        a(f"v_mul_u32_u24 {vr(T[5])}, 20, {vr(T[4])}")
        a(f"v_sub_u32 {vr(T[3])}, {vr(T[3])}, {vr(T[5])}")
        a(f"v_mul_u32_u24 {vr(T[4])}, {VH}, {vr(T[4])}")
        a(f"v_lshl_add_u32 {vr(T[3])}, {vr(T[3])}, 4, {vr(T[4])}")
        a(f"v_add_u32 {vr(aW+t)}, {vr(T[3])}, {vr(T[2])}")
    for t in range(5):
        for p in range(2):
            d = pk + 4 + 4*((2*t + p) % 8)
            b = acc + 16*t + 8*p
            for i in range(4):
                a(f"v_cvt_pk_bf16_f32 {vr(d+i)}, {vr(b+2*i)}, {vr(b+2*i+1)}")
            a(f"buffer_store_dwordx4 {vr(d,4)}, {vr(aW+t)}, {sr(dWS,4)}, s{sT0} offen offset:{VROWS*32*p}{st}")
    done('v')

    a.label(f"{name}_gu")
    R = regs(True)
    aX, aW, acc, pk = R['aX'], R['aW'], R['acc'], R['fw'][0]
    a(f"s_and_b32 s{sWM}, s{sWAVE}, 1")
    a(f"s_lshr_b32 s{sWN}, s{sWAVE}, 1")
    if OPT['prefetch']: prefetch_setup(True, R['vP'])
    ds_x_addr(aX, 6)
    a(f"v_lshrrev_b32 {vr(T[0])}, 5, {vr(vL)}")
    a(f"v_bfe_u32 {vr(T[1])}, {vr(vL)}, 2, 2")
    a(f"v_lshl_add_u32 {vr(T[0])}, {vr(T[0])}, 3, {vr(T[1])}")
    a(f"v_mul_u32_u24 {vr(T[0])}, 384, {vr(T[0])}")
    a(f"v_bfe_u32 {vr(T[2])}, {vr(vL)}, 1, 1")
    a(f"v_mul_u32_u24 {vr(T[3])}, 12288, {vr(T[2])}")
    a(f"v_add_u32 {vr(T[0])}, {vr(T[0])}, {vr(T[3])}")
    a(f"v_lshrrev_b32 {vr(T[1])}, 1, {vr(T[1])}")
    a(f"v_lshl_add_u32 {vr(T[1])}, {vr(T[2])}, 1, {vr(T[1])}")
    a(f"v_bfe_u32 {vr(T[2])}, {vr(vL)}, 4, 1")
    a(f"v_lshl_add_u32 {vr(T[0])}, {vr(T[2])}, 4, {vr(T[0])}")
    a(f"v_and_b32 {vr(T[2])}, 1, {vr(vL)}")
    a(f"v_lshl_add_u32 {vr(T[0])}, {vr(T[2])}, 3, {vr(T[0])}")
    a(f"s_mul_i32 s{sT0}, s{sWN}, 3")
    for t in range(3):
        a(f"s_add_u32 s{sT1}, s{sT0}, {t}")
        a(f"v_xor_b32 {vr(T[3])}, s{sT1}, {vr(T[1])}")
        a(f"v_lshl_add_u32 {vr(aW+t)}, {vr(T[3])}, 5, {vr(T[0])}")
        a(f"v_add_u32 {vr(aW+3+t)}, 49152, {vr(aW+t)}")
    main('gu', R)
    a(f"s_lshl_b32 s{sT0}, s{sRB}, 1")
    a(f"s_add_u32 s{sT0}, s{sT0}, s{sWM}")
    a(f"s_mul_i32 s{sT0}, s{sT0}, {2*108}")
    a(f"s_sub_u32 s{sT1}, s{sCOL}, 6")
    a(f"s_mul_i32 s{sT1}, s{sT1}, 12")
    a(f"s_add_u32 s{sT0}, s{sT0}, s{sT1}")
    a(f"s_mul_i32 s{sT1}, s{sWN}, 3")
    a(f"s_add_u32 s{sT0}, s{sT0}, s{sT1}")
    a(f"s_lshl_b32 s{sT0}, s{sT0}, 10")
    a(f"s_add_u32 s{sT0}, s{sT0}, {HF}")
    a(f"s_add_u32 s{sT1}, s{sT0}, {108*1024}")
    a(f"s_mov_b32 s{sC0}, {f2u(-math.log2(math.e)):#x}")
    a(f"s_mov_b32 s{sC0+1}, s{sC0}")
    a(f"s_mov_b32 s{sC1}, 1.0")
    a(f"s_mov_b32 s{sC1+1}, 1.0")
    a(f"v_lshlrev_b32 {vr(T[0])}, 4, {vr(vL)}")
    order = [(tt, t) for t in range(3) for tt in range(2)]
    for n, (tt, t) in enumerate(order):
        b = acc + 16*(tt*3 + t)
        d = pk + 4*n
        gs = [b, b+2, b+8, b+10]; us = [b+4, b+6, b+12, b+14]
        for q in gs: a(f"v_pk_mul_f32 {vr(q,2)}, {vr(q,2)}, {sr(sC0,2)}")
        for q in gs:
            a(f"v_exp_f32 {vr(q)}, {vr(q)}"); a(f"v_exp_f32 {vr(q+1)}, {vr(q+1)}")
        for q in gs: a(f"v_pk_add_f32 {vr(q,2)}, {vr(q,2)}, {sr(sC1,2)}")
        for q in gs:
            a(f"v_rcp_f32 {vr(q)}, {vr(q)}"); a(f"v_rcp_f32 {vr(q+1)}, {vr(q+1)}")
        for q, u in zip(gs, us): a(f"v_pk_mul_f32 {vr(q,2)}, {vr(q,2)}, {vr(u,2)}")
        for i, q in enumerate(gs): a(f"v_cvt_pk_bf16_f32 {vr(d+i)}, {vr(q)}, {vr(q+1)}")
        a(f"buffer_store_dwordx4 {vr(d,4)}, {vr(T[0])}, {sr(dWS,4)}, s{sT1 if tt else sT0} offen offset:{1024*t}{st}")
    done('gu')

def misc(a, name, vL, T, base, st, done):
    rg = Regs(base, 168)
    zz = rg.alloc('z', 4); aR = rg.alloc('aR', 3); vA = rg.alloc('vA', 20)
    gw = rg.alloc('gw', 20, 2); xregs = [rg.alloc(f'x{q}', 20, 2) for q in range(4)]
    fr = gw
    sU, sMI = sWM, sWN
    sKS, sHF, sSRC, sDST, sDS2 = 60, 61, 62, 63, 64
    a(f"s_lshl_b32 s{sMI}, s{sXCD}, 1")
    a(f"s_add_u32 s{sMI}, s{sMI}, s{sSLOT}")
    a(f"s_sub_u32 s{sMI}, s{sMI}, 30")
    a(f"s_mul_i32 s{sU}, s{sMI}, 12")
    a(f"s_add_u32 s{sU}, s{sU}, s{sWAVE}")
    a.vm = []; a.lg = []
    for i in range(10):
        a(f"v_add_u32 {vr(T[2])}, {64*i}, {vr(vL)}")
        a(f"v_mul_u32_u24 {vr(T[3])}, 1639, {vr(T[2])}")
        a(f"v_lshrrev_b32 {vr(T[3])}, 16, {vr(T[3])}")
        a(f"v_mul_u32_u24 {vr(T[4])}, 40, {vr(T[3])}")
        a(f"v_sub_u32 {vr(T[4])}, {vr(T[2])}, {vr(T[4])}")
        a(f"v_and_b32 {vr(T[5])}, 2, {vr(T[3])}")
        a(f"v_lshlrev_b32 {vr(T[5])}, 1, {vr(T[5])}")
        a(f"v_xor_b32 {vr(T[4])}, {vr(T[4])}, {vr(T[5])}")
        a(f"v_lshlrev_b32 {vr(T[4])}, 4, {vr(T[4])}")
        a(f"v_mul_u32_u24 {vr(T[5])}, 1280, {vr(T[3])}")
        a(f"v_add_u32 {vr(vA+i)}, {vr(T[5])}, {vr(T[4])}")
        a(f"v_lshrrev_b32 {vr(T[5])}, 2, {vr(T[3])}")
        a(f"v_mul_u32_u24 {vr(T[5])}, {16*1280}, {vr(T[5])}")
        a(f"v_add_u32 {vr(vA+10+i)}, {vr(vA+i)}, {vr(T[5])}")
    a(f"v_lshrrev_b32 {vr(T[2])}, 5, {vr(vL)}")
    a(f"v_bfe_u32 {vr(T[3])}, {vr(vL)}, 2, 2")
    a(f"v_lshl_add_u32 {vr(T[2])}, {vr(T[2])}, 2, {vr(T[3])}")
    a(f"v_mul_u32_u24 {vr(T[2])}, 640, {vr(T[2])}")
    a(f"v_bfe_u32 {vr(T[4])}, {vr(vL)}, 4, 1")
    a(f"v_and_b32 {vr(T[5])}, 3, {vr(vL)}")
    a(f"v_lshl_add_u32 {vr(T[4])}, {vr(T[4])}, 2, {vr(T[5])}")
    a(f"v_lshl_add_u32 {vr(T[2])}, {vr(T[4])}, 3, {vr(T[2])}")
    a(f"s_mul_i32 s{sWW}, s{sWAVE}, 10240")
    a(f"v_add_u32 {vr(T[2])}, s{sWW}, {vr(T[2])}")
    a(f"v_lshrrev_b32 {vr(T[3])}, 1, {vr(T[3])}")
    a(f"v_lshl_add_u32 {vr(aR)}, {vr(T[3])}, 6, {vr(T[2])}")
    a(f"v_xor_b32 {vr(T[3])}, 1, {vr(T[3])}")
    a(f"v_lshl_add_u32 {vr(aR+1)}, {vr(T[3])}, 6, {vr(T[2])}")
    a(f"v_lshlrev_b32 {vr(aR+2)}, 4, {vr(vL)}")
    a("s_waitcnt lgkmcnt(0)")
    srd(a, dX, sXP, S*D*2)
    srd(a, dWS, sWS, WS_SIZE)
    srd(a, dG, sGW, D*2)
    a.label(f"{name}_unit")
    a(f"s_lshr_b32 s{sKS}, s{sU}, 1")
    a(f"s_and_b32 s{sHF}, s{sU}, 1")
    a(f"s_cmp_ge_u32 s{sKS}, 108")
    a(f"s_cbranch_scc1 {name}_unit_wo")
    srd(a, dW, sWD, F*D*2)
    a(f"s_mul_i32 s{sSRC}, s{sKS}, {16*1280}")
    a(f"s_mul_i32 s{sDST}, s{sHF}, {10*110592}")
    a(f"s_lshl_b32 s{sT0}, s{sKS}, 10")
    a(f"s_add_u32 s{sDST}, s{sDST}, s{sT0}")
    a(f"s_add_u32 s{sDST}, s{sDST}, {WDF}")
    a(f"s_mov_b32 s{sDS2}, 110592")
    a(f"s_branch {name}_unit_plain")
    a.label(f"{name}_unit_wo")
    srd(a, dW, sWO, D*D*2)
    a(f"s_sub_u32 s{sKS}, s{sKS}, 108")
    a(f"s_mul_i32 s{sDST}, s{sHF}, {10*40960}")
    a(f"s_lshl_b32 s{sT0}, s{sKS}, 10")
    a(f"s_add_u32 s{sDST}, s{sDST}, s{sT0}")
    a(f"s_add_u32 s{sDST}, s{sDST}, {WOF}")
    a(f"s_mov_b32 s{sDS2}, 40960")
    a(f"s_mul_i32 s{sSRC}, s{sKS}, {20*1280}")
    a(f"s_cmp_lt_u32 s{sKS}, 32")
    a(f"s_cbranch_scc1 {name}_unit_plain")
    a(f"s_sub_u32 s{sKS}, s{sKS}, 32")
    a(f"s_mul_i32 s{sSRC}, s{sKS}, {80*1280}")
    a(f"s_add_u32 s{sSRC}, s{sSRC}, {16*1280}")
    def unit_dma(b):
        a(f"s_mul_i32 s{sT0}, s{sHF}, 640")
        a(f"s_add_u32 s{sSRC}, s{sSRC}, s{sT0}")
        for i in range(10):
            a(f"s_add_u32 m0, s{sWW}, {1024*i}")
            a("s_nop 0")
            a(f"buffer_load_dwordx4 {vr(b+i)}, {sr(dW,4)}, s{sSRC} offen lds")
    unit_dma(vA + 10)
    a(f"s_branch {name}_unit_go")
    a.label(f"{name}_unit_plain")
    unit_dma(vA)
    a.label(f"{name}_unit_go")
    a("s_waitcnt vmcnt(0)")
    for n in range(10):
        for u in range(2):
            a.lds(f"ds_read_b64_tr_b16 {vr(fr+4*n+2*u,2)}, {vr(aR + (n & 1))} offset:{128*(n >> 1) + u*8*640}", n)
        if n >= 4:
            a.wait(lg=n-4)
            a(f"buffer_store_dwordx4 {vr(fr+4*(n-4),4)}, {vr(aR+2)}, {sr(dWS,4)}, s{sDST} offen{st}")
            a(f"s_add_u32 s{sDST}, s{sDST}, s{sDS2}")
    for n in range(6, 10):
        a.wait(lg=n)
        a(f"buffer_store_dwordx4 {vr(fr+4*n,4)}, {vr(aR+2)}, {sr(dWS,4)}, s{sDST} offen{st}")
        a(f"s_add_u32 s{sDST}, s{sDST}, s{sDS2}")
    a(f"s_add_u32 s{sU}, s{sU}, 192")
    a(f"s_cmp_lt_u32 s{sU}, 296")
    a(f"s_cbranch_scc1 {name}_unit")
    a(f"s_cmp_ge_u32 s{sWAVE}, 8")
    a(f"s_cbranch_scc1 {name}_misc_done")
    a(f"s_lshl_b32 s{sU}, s{sMI}, 3")
    a(f"s_add_u32 s{sU}, s{sU}, s{sWAVE}")
    a(f"v_and_b32 {vr(T[0])}, 15, {vr(vL)}")
    a(f"v_lshlrev_b32 {vr(T[0])}, 4, {vr(T[0])}")
    a("s_waitcnt vmcnt(0)")
    a.vm = []
    for i in range(5):
        a.vmem(f"buffer_load_dwordx4 {vr(gw+4*i,4)}, {vr(T[0])}, {sr(dG,4)}, 0 offen offset:{256*i}", 'gw')
    a(f"v_lshrrev_b32 {vr(T[1])}, 4, {vr(vL)}")
    a(f"v_mul_u32_u24 {vr(T[2])}, 1280, {vr(T[1])}")
    a(f"v_add_u32 {vr(T[0])}, {vr(T[0])}, {vr(T[2])}")
    for q in range(4):
        a(f"s_lshl_b32 s{sT0}, s{sU}, 4")
        a(f"s_add_u32 s{sT0}, s{sT0}, {4*q}")
        a(f"s_mul_i32 s{sT0}, s{sT0}, 1280")
        for i in range(5):
            a.vmem(f"buffer_load_dwordx4 {vr(xregs[q]+4*i,4)}, {vr(T[0])}, {sr(dX,4)}, s{sT0} offen offset:{256*i}", ('gx', q))
    for q in range(4):
        a.wait(vm=('gx', q))
        a(f"v_mov_b32 {vr(zz+q)}, 0")
        for i in range(20):
            a(f"v_dot2_f32_bf16 {vr(zz+q)}, {vr(xregs[q]+i)}, {vr(gw+i)}, {vr(zz+q)}")
    a.nop(3)
    for sh in ("row_ror:8", "row_ror:4", "row_ror:2", "row_ror:1"):
        for q in range(4):
            a(f"v_add_f32_dpp {vr(zz+q)}, {vr(zz+q)}, {vr(zz+q)} {sh} row_mask:0xf bank_mask:0xf")
    a(f"v_and_b32 {vr(T[2])}, 15, {vr(vL)}")
    for q in range(1, 4):
        a(f"v_cmp_eq_u32 vcc, {q}, {vr(T[2])}")
        a("s_nop 1")
        a(f"v_cndmask_b32 {vr(zz)}, {vr(zz)}, {vr(zz+q)}, vcc")
    a(f"v_mul_f32 {vr(zz)}, {f2u(-math.log2(math.e)):#x}, {vr(zz)}")
    a(f"v_exp_f32 {vr(zz)}, {vr(zz)}")
    a("s_nop 0")
    a(f"v_add_f32 {vr(zz)}, 1.0, {vr(zz)}")
    a(f"v_rcp_f32 {vr(zz)}, {vr(zz)}")
    a(f"v_lshl_add_u32 {vr(T[3])}, {vr(T[2])}, 2, {vr(T[1])}")
    a(f"v_lshlrev_b32 {vr(T[3])}, 2, {vr(T[3])}")
    a(f"v_cmp_gt_u32 vcc, 4, {vr(T[2])}")
    a(f"v_mov_b32 {vr(T[5])}, {OOB}")
    a("s_nop 0")
    a(f"v_cndmask_b32 {vr(T[3])}, {vr(T[5])}, {vr(T[3])}, vcc")
    a(f"s_lshl_b32 s{sT0}, s{sU}, 6")
    a(f"s_add_u32 s{sT0}, s{sT0}, {GG}")
    a(f"buffer_store_dword {vr(zz)}, {vr(T[3])}, {sr(dWS,4)}, s{sT0} offen{st}")
    a.label(f"{name}_misc_done")
    done()

def emit_k1(name, st=""):
    a = Asm()
    a.raw(f".globl {name}\n.p2align 8\n.type {name},@function\n{name}:")
    vL = 1; T = list(range(2, 8)); base = 8
    entry(a, name, vL, T[0])
    a(f"s_cmp_ge_u32 s{sSLOT}, 30")
    a(f"s_cbranch_scc1 {name}_misc")
    a(f"s_cmp_lt_u32 s{sWAVE}, 8")
    a(f"s_cbranch_scc1 {name}_main")
    loader(a, name, vL, T, base, lambda: a("s_endpgm"))
    a.label(f"{name}_main")
    compute(a, name, vL, T, base, st, lambda k: a("s_endpgm"))
    a.label(f"{name}_misc")
    misc(a, name, vL, T, base, st, lambda: None)
    a.label(f"{name}_end")
    a("s_endpgm")
    return a.text(), kd(name, 168), 163840
```

```python
import build, mk, p1
base = mk.parts()
for tag, opt in (("a", dict(prefetch=False, stagger=True, pf_lead=0)), ("b", dict(prefetch=True, stagger=True, pf_lead=6)), ("c", dict(prefetch=True, stagger=True, pf_lead=0)), ("d", dict(prefetch=True, stagger=True, pf_lead=4))):
    p1.OPT = opt
    p = [("proj_kernel", 256, 768, p1.emit_k1("proj_kernel", ""))] + base[1:]
    build.build(p, f"w{tag}.s")
p1.OPT = dict(prefetch=True, stagger=True, pf_lead=6)
p = [("proj_kernel", 256, 768, p1.emit_k1("proj_kernel", " sc1"))] + base[1:]
build.build(p, f"we.s")
p = [("proj_kernel", 256, 768, p1.emit_k1("proj_kernel", " nt"))] + base[1:]
build.build(p, f"wf.s")
```

```python
import sys
from asmlib import *
from common import *
HDR = open('gated_mix__softmax_full_mha__glu_gated_glu__prompt.s.ref').read().split("; Override launch")[0]
MAIN = 'gated_mix__softmax_full_mha__glu_gated_glu__prompt_kernel'
def build(parts, path):
    s = HDR
    for name, grid, block, (txt, desc, lds) in parts:
        kn = "" if name == MAIN else f"kernel={name} "
        s += f"; @launch {kn}grid=({grid},1,1) block=({block},1,1) lds={lds}\n"
    s += '.amdgcn_target "amdgcn-amd-amdhsa--gfx950"\n.text\n'
    seen = set()
    for name, grid, block, (txt, desc, lds) in parts:
        if name in seen: continue
        seen.add(name); s += txt
    s += '.section .rodata,"a"\n'
    seen = set()
    for name, grid, block, (txt, desc, lds) in parts:
        if name in seen: continue
        seen.add(name); s += desc
    open(path, "w").write(s)
```

```python
import math, struct
S, D, H, DH, F = 2048, 640, 32, 20, 1728
VROWS = 20
VT = VROWS*64
VH = 64*VT
QF = 0
KF = QF + 32*64*1280
VF = KF + 32*64*1280
HF = VF + 32*VH
WDF = HF + 64*108*1024
WOF = WDF + 20*108*1024
GG = WOF + 20*40*1024
OF = GG + 8192
BF = OF + 64*32*1280
WS_END = BF + 64*4*5*4*512
FL = (WS_END + 4095)//4096*4096
FQ = FL
FM = FL + 768
FH = FL + 8192
FO = FL + 12288
WS_SIZE = 0x10000000
QSCALE = math.log2(math.e) / math.sqrt(DH)
def f2u(x): return struct.unpack("<I", struct.pack("<f", x))[0]
PT = [(0,2),(1,3),(4,6),(5,7), (8,9),(10,12),(11,13),(14,15), (16,18),(17,19),(20,22),(21,23),
      (24,25),(26,28),(27,29),(30,31), (32,33),(34,35),(36,38),(37,39)]
UNIT_PAIRS = [(0,1),(3,4),(5,6),(8,9),(10,11),(13,14),(15,16),(18,19)]
R_SLOTS = [2,7,12,17]
def lut(t):
    v = 0
    for cp in range(8):
        a, hp = cp >> 1, cp & 1
        lp = PT[4*t + a][hp] - 8*t
        assert 0 <= lp < 8
        v |= lp << (4*cp)
    return v
OOB = 0x40000000
```

```python
from asmlib import *
from common import *
import p1, p2
from p1 import sSLOT, sWAVE, sWS, dWS

def emit_k2(name, st=""):
    a = Asm()
    a.raw(f".globl {name}\n.p2align 8\n.type {name},@function\n{name}:")
    vL = 1; T = list(range(2, 8)); base = 8
    p1.entry(a, name, vL, T[0])
    a("s_waitcnt lgkmcnt(0)")
    srd(a, dWS, sWS, WS_SIZE)
    a(f"s_cmp_ge_u32 s{sWAVE}, 8")
    a(f"s_cbranch_scc1 {name}_aux")
    p2.attention(a, name, vL, T, base, st, False)
    a.label(f"{name}_aux")
    p2.aux(a, name, vL, T, base, st, False)
    a.label(f"{name}_end")
    a("s_endpgm")
    return a.text(), kd(name, 168, 102), p2.LDS

def emit_k12(name, st1=" sc1", st2=""):
    a = Asm()
    a.raw(f".globl {name}\n.p2align 8\n.type {name},@function\n{name}:")
    vL = 1; T = list(range(2, 8)); base = 8
    p1.entry(a, name, vL, T[0], dbg=p2.sDBG)
    a(f"s_cmp_ge_u32 s{sSLOT}, 30")
    a(f"s_cbranch_scc1 {name}_pre")
    a(f"s_cmp_ge_u32 s{sWAVE}, 8")
    a(f"s_cbranch_scc1 {name}_ld")
    a.label(f"{name}_pre")
    p2.reset_flags(a, name, vL, T)
    a(f"s_cmp_ge_u32 s{sSLOT}, 30")
    a(f"s_cbranch_scc1 {name}_misc")
    def done(kind):
        if kind != 'gu':
            p2.publish(a, f"{name}_pub{kind}", vL, T, 8, st1, True)
        a(f"s_branch {name}_att")
    hook = lambda k, n: p2.count_in(a, f"{name}_cnt{k}", T, n)
    p1.compute(a, name, vL, T, base, st1, done, hook)
    a.label(f"{name}_ld")
    p1.loader(a, name, vL, T, base, lambda: a(f"s_branch {name}_aux"), lambda gu: p2.wait_cleared(a, f"{name}_clr{gu}", T, 8))
    a.label(f"{name}_misc")
    a("s_barrier")
    def mdone():
        p2.wait_cleared(a, f"{name}_clrm", T, 0)
        a("s_barrier")
        p2.publish(a, f"{name}_pubm", vL, T, 12, st1, True)
        a("s_barrier")
        a(f"s_cmp_ge_u32 s{sWAVE}, 8")
        a(f"s_cbranch_scc1 {name}_aux")
    p1.misc(a, name, vL, T, base, st1, mdone)
    a.label(f"{name}_att")
    p2.attention(a, name, vL, T, base, st2, True)
    a.label(f"{name}_aux")
    p2.aux(a, name, vL, T, base, st2, True)
    a.label(f"{name}_end")
    a("s_endpgm")
    return a.text(), kd(name, 168, 102), p2.LDS
```

```python
from asmlib import *
from common import *

WRING = 0
XRING = 98304
XPOS = [0, 2, 1]
NSTEP = 20
LASTB = 17
OPT = dict(prefetch=True, stagger=True, pf_lead=6)

sXP, sWQ, sWO, sBX, sWG, sWU, sWD, sGW = 4, 6, 8, 10, 12, 14, 16, 18
sWS, sOUT = 20, 22
dX, dW, dWS = 24, 28, 32
sXCD, sSLOT, sWAVE, sCOL, sRB, sT0, sT1, sT2, sT3 = 36, 37, 38, 39, 40, 41, 42, 43, 44
sXW, sWW, sWK = 45, 46, 47
sC0, sC1 = 48, 50
sWM, sWN = 52, 53
sHW = 54
sPS = 55
dG = 56
def xslot(b): return XRING + 16384*XPOS[b % 3]

def entry(a, name, vL, vT, dbg=None):
    a("s_cmp_ge_u32 s2, 256")
    a(f"s_cbranch_scc1 {name}_end")
    a(f"s_load_dwordx16 s[4:19], s[0:1], 0")
    a(f"s_load_dwordx2 s[{sWS}:{sWS+1}], s[0:1], 80")
    a(f"s_load_dwordx2 s[{sOUT}:{sOUT+1}], s[0:1], 64")
    if dbg: a(f"s_load_dwordx2 s[{dbg}:{dbg+1}], s[0:1], 72")
    a(f"v_lshrrev_b32 {vr(vT)}, 6, v0")
    a(f"v_and_b32 {vr(vL)}, 63, v0")
    a(f"v_readfirstlane_b32 s{sWAVE}, {vr(vT)}")
    a(f"s_and_b32 s{sXCD}, s2, 7")
    a(f"s_lshr_b32 s{sSLOT}, s2, 3")
    a(f"s_and_b32 s{sT1}, s{sXCD}, 1")
    a(f"s_lshr_b32 s{sT0}, s{sSLOT}, 2")
    a(f"s_lshl_b32 s{sT0}, s{sT0}, 1")
    a(f"s_add_u32 s{sCOL}, s{sT0}, s{sT1}")
    a(f"s_mul_i32 s{sT1}, s{sT1}, 18")
    a(f"s_add_u32 s{sT1}, s{sT1}, s{sSLOT}")
    a(f"s_add_u32 s{sT1}, s{sT1}, 12")
    a(f"s_lshr_b32 s{sT0}, s{sT1}, 2")
    a(f"s_cmp_lt_u32 s{sSLOT}, 12")
    a(f"s_cselect_b32 s{sCOL}, s{sCOL}, s{sT0}")
    a(f"s_cselect_b32 s{sT0}, s{sSLOT}, s{sT1}")
    a(f"s_and_b32 s{sT0}, s{sT0}, 3")
    a(f"s_lshr_b32 s{sRB}, s{sXCD}, 1")
    a(f"s_lshl_b32 s{sRB}, s{sRB}, 2")
    a(f"s_add_u32 s{sRB}, s{sRB}, s{sT0}")

def loader(a, name, vL, T, base, done, hook=None):
    vWo, vXo = base, base + 6
    a(f"s_sub_u32 s{sHW}, s{sWAVE}, 8")
    a(f"s_lshl_b32 s{sXW}, s{sHW}, 12")
    a(f"s_mul_i32 s{sWW}, s{sHW}, 6144")
    a(f"s_lshl_b32 s{sT0}, s{sRB}, 7")
    a(f"s_lshl_b32 s{sT1}, s{sHW}, 5")
    a(f"s_add_u32 s{sT0}, s{sT0}, s{sT1}")
    a(f"s_mul_i32 s{sT0}, s{sT0}, 1280")
    a(f"v_lshrrev_b32 {vr(T[0])}, 3, {vr(vL)}")
    a(f"v_mul_u32_u24 {vr(T[0])}, 1280, {vr(T[0])}")
    a(f"v_add_u32 {vr(T[0])}, s{sT0}, {vr(T[0])}")
    a(f"v_lshrrev_b32 {vr(T[1])}, 4, {vr(vL)}")
    a(f"v_and_b32 {vr(T[2])}, 7, {vr(vL)}")
    a(f"v_xor_b32 {vr(T[1])}, {vr(T[1])}, {vr(T[2])}")
    a(f"v_lshl_add_u32 {vr(vXo)}, {vr(T[1])}, 4, {vr(T[0])}")
    a(f"v_xor_b32 {vr(T[1])}, 4, {vr(T[1])}")
    a(f"v_lshl_add_u32 {vr(vXo+1)}, {vr(T[1])}, 4, {vr(T[0])}")
    a(f"v_add_u32 {vr(vXo+1)}, {8*1280 - 1024}, {vr(vXo+1)}")
    a(f"v_add_u32 {vr(vXo+2)}, {16*1280}, {vr(vXo)}")
    a(f"v_add_u32 {vr(vXo+3)}, {16*1280}, {vr(vXo+1)}")
    a(f"s_cmp_ge_u32 s{sCOL}, 6")
    a(f"s_cbranch_scc1 {name}_ld_gu")
    for gu in (0, 1):
        pitchG = 3456 if gu else 3840
        if gu: a.label(f"{name}_ld_gu")
        a.vm = []
        def woff(j):
            if gu:
                a(f"s_and_b32 s{sT0}, s{sHW}, 1")
                a(f"s_mul_i32 s{sT0}, s{sT0}, 384")
            else:
                a(f"s_mul_i32 s{sT0}, s{sHW}, 384")
            a(f"s_add_u32 s{sT0}, s{sT0}, {64*j}")
            a(f"v_add_u32 {vr(T[0])}, s{sT0}, {vr(vL)}")
            a(f"v_mul_u32_u24 {vr(T[1])}, {2731 if gu else 1639}, {vr(T[0])}")
            a(f"v_lshrrev_b32 {vr(T[1])}, 16, {vr(T[1])}")
            a(f"v_mul_u32_u24 {vr(T[2])}, {24 if gu else 40}, {vr(T[1])}")
            a(f"v_sub_u32 {vr(T[2])}, {vr(T[0])}, {vr(T[2])}")
            a(f"v_and_b32 {vr(T[3])}, 2, {vr(T[1])}")
            if gu:
                a(f"v_or_b32 {vr(T[3])}, s{sT2}, {vr(T[3])}")
            else:
                a(f"v_lshlrev_b32 {vr(T[3])}, 1, {vr(T[3])}")
            a(f"v_xor_b32 {vr(T[2])}, {vr(T[2])}, {vr(T[3])}")
            a(f"v_mul_u32_u24 {vr(T[1])}, {pitchG}, {vr(T[1])}")
            a(f"v_lshl_add_u32 {vr(T[1])}, {vr(T[2])}, 4, {vr(T[1])}")
            a(f"s_sub_u32 s{sT0}, s{sT3}, {1024*(j % 3)}")
            if gu or j < 2:
                a(f"v_add_u32 {vr(vWo+j)}, s{sT0}, {vr(T[1])}")
            else:
                a(f"v_add_u32 {vr(T[1])}, s{sT0}, {vr(T[1])}")
                a(f"v_cmp_gt_u32 vcc, 1280, {vr(T[0])}")
                a(f"v_mov_b32 {vr(T[2])}, {OOB}")
                a("s_nop 0")
                a(f"v_cndmask_b32 {vr(vWo+j)}, {vr(T[2])}, {vr(T[1])}, vcc")
        def dma_w(s):
            a(f"s_mov_b32 s{sWK}, {s*32*pitchG}")
            for g in range(2):
                a(f"s_add_u32 m0, s{sWW}, {WRING + (s % 4)*24576 + g*3072}")
                a("s_nop 0")
                for j in range(3):
                    a.vmem(f"buffer_load_dwordx4 {vr(vWo+3*g+j)}, {sr(dW,4)}, s{sWK} offen offset:{1024*j} lds", ('w', s))
        def dma_x(b, h):
            a(f"s_add_u32 m0, s{sXW}, {xslot(b) + h*2048 - b*128}")
            a("s_nop 0")
            for j in range(2):
                a.vmem(f"buffer_load_dwordx4 {vr(vXo+2*h+j)}, {sr(dX,4)}, 0 offen offset:{b*128 + 1024*j} lds", ('x', b))
        if gu:
            a(f"s_lshr_b32 s{sT2}, s{sHW}, 1")
            a(f"s_sub_u32 s{sT3}, s{sCOL}, 6")
            a(f"s_mul_i32 s{sT3}, s{sT3}, 384")
        else:
            a(f"s_mul_i32 s{sT3}, s{sCOL}, 640")
        a("s_waitcnt lgkmcnt(0)")
        srd(a, dX, sXP, S*D*2)
        dma_x(0, 0); dma_x(0, 1)
        if gu:
            a(f"s_cmp_eq_u32 s{sT2}, 0")
            a(f"s_cselect_b32 s{dW}, s{sWG}, s{sWU}")
            a(f"s_cselect_b32 s{dW+1}, s{sWG+1}, s{sWU+1}")
            a(f"s_mov_b32 s{dW+2}, {D*F*2}")
            a(f"s_mov_b32 s{dW+3}, 0x00020000")
            a(f"s_lshl_b32 s{sT2}, s{sT2}, 2")
        else:
            srd(a, dW, sWQ, D*3*D*2)
        for j in range(6): woff(j)
        dma_w(0); dma_w(1); dma_x(1, 0); dma_x(1, 1); dma_w(2)
        srd(a, dWS, sWS, WS_SIZE)
        for s in range(LASTB + 1):
            lim = s if s < LASTB else NSTEP
            a.wait(vm=lambda t: (t[0] == 'w' and t[1] <= lim) or (t[0] == 'x' and t[1] <= lim >> 1))
            a("s_barrier")
            if s + 3 < NSTEP: dma_w(s + 3)
            bx = (s + 4) >> 1
            if bx < NSTEP // 2: dma_x(bx, s & 1)
            if hook and s == 12: hook(gu)
        done()

def compute(a, name, vL, T, base, st, done, hook=None):
    def ds_x_addr(aX, sh):
        a(f"v_and_b32 {vr(T[0])}, 31, {vr(vL)}")
        a(f"v_lshrrev_b32 {vr(T[1])}, 5, {vr(vL)}")
        a(f"v_bfe_u32 {vr(T[2])}, {vr(vL)}, 1, 3")
        a(f"v_xor_b32 {vr(T[1])}, {vr(T[1])}, {vr(T[2])}")
        a(f"s_lshl_b32 s{sT0}, s{sWM}, {sh + 7}")
        a(f"s_add_u32 s{sT0}, s{sT0}, {XRING}")
        a(f"v_lshl_add_u32 {vr(T[0])}, {vr(T[0])}, 7, s{sT0}")
        for e in range(4):
            a(f"v_xor_b32 {vr(T[2])}, {2*e}, {vr(T[1])}")
            a(f"v_lshl_add_u32 {vr(aX+e)}, {vr(T[2])}, 4, {vr(T[0])}")
    def pf_plan(gu):
        lead = OPT['pf_lead']
        if gu:  P = {1: ('g', 3), 2: ('u', 3), 3: ('g', 13), 4: ('u', 13), 5: ('x', 3)}
        else:   P = {1: ('q', 3), 2: ('q', 9), 3: ('q', 15), 5: ('x', 3)}
        return {w: (m, f, max(0, (2*f if m == 'x' else f) - lead)) for w, (m, f) in P.items()}
    def prefetch_setup(gu, vP):
        nl = 3 if gu else 5
        per = 2*nl
        nst = 64 // per
        pitch = 3456 if gu else 3840
        plan = pf_plan(gu)
        a(f"s_cmp_eq_u32 s{sWAVE}, 5")
        a(f"s_mov_b32 s{sT0}, {(65536 + per - 1)//per}")
        a(f"s_cselect_b32 s{sT0}, {(65536 + 8)//9}, s{sT0}")
        a(f"s_cselect_b32 s{sT1}, 9, {per}")
        a(f"v_mul_u32_u24 {vr(T[0])}, s{sT0}, {vr(vL)}")
        a(f"v_lshrrev_b32 {vr(T[0])}, 16, {vr(T[0])}")
        a(f"v_mul_u32_u24 {vr(T[1])}, s{sT1}, {vr(T[0])}")
        a(f"v_sub_u32 {vr(T[1])}, {vr(vL)}, {vr(T[1])}")
        a(f"s_cbranch_scc1 {name}_pfx{int(gu)}")
        a(f"v_cmp_le_u32 vcc, {nl}, {vr(T[1])}")
        a(f"v_mul_u32_u24 {vr(T[0])}, {32*pitch}, {vr(T[0])}")
        a(f"v_lshl_add_u32 {vr(T[0])}, {vr(T[1])}, 7, {vr(T[0])}")
        a(f"v_mov_b32 {vr(T[2])}, {pitch - 128*nl}")
        a(f"v_cndmask_b32 {vr(T[2])}, 0, {vr(T[2])}, vcc")
        a(f"v_add_u32 {vr(T[0])}, {vr(T[0])}, {vr(T[2])}")
        a(f"v_cmp_gt_u32 vcc, {nst*per}, {vr(vL)}")
        a(f"s_mul_i32 s{sT0}, s{sRB}, {2*pitch}")
        if gu:
            a(f"s_sub_u32 s{sT1}, s{sCOL}, 6")
            a(f"s_mul_i32 s{sT1}, s{sT1}, 384")
            a(f"s_add_u32 s{sT0}, s{sT0}, s{sT1}")
            a(f"s_cmp_ge_u32 s{sWAVE}, 3")
            a(f"s_cselect_b32 s{sT1}, {13*32*pitch}, {3*32*pitch}" if False else f"s_cselect_b32 s{sT1}, 13, 3")
        else:
            a(f"s_mul_i32 s{sT1}, s{sCOL}, 640")
            a(f"s_add_u32 s{sT0}, s{sT0}, s{sT1}")
            a(f"s_mul_i32 s{sT1}, s{sWAVE}, 6")
            a(f"s_sub_u32 s{sT1}, s{sT1}, 3")
        a(f"s_mul_i32 s{sT1}, s{sT1}, {32*pitch}")
        a(f"s_add_u32 s{sT0}, s{sT0}, s{sT1}")
        a(f"s_branch {name}_pfj{int(gu)}")
        a.label(f"{name}_pfx{int(gu)}")
        a(f"s_mul_i32 s{sT0}, s{sCOL}, 9")
        a(f"v_add_u32 {vr(T[1])}, s{sT0}, {vr(T[1])}")
        a(f"v_cmp_gt_u32 vcc, 128, {vr(T[1])}")
        a(f"v_mul_u32_u24 {vr(T[1])}, 1280, {vr(T[1])}")
        a(f"v_lshl_add_u32 {vr(T[0])}, {vr(T[0])}, 7, {vr(T[1])}")
        a(f"s_bitset0_b32 vcc_hi, 31")
        a(f"s_mul_i32 s{sT0}, s{sRB}, {128*1280}")
        a(f"s_add_u32 s{sT0}, s{sT0}, {3*128}")
        a.label(f"{name}_pfj{int(gu)}")
        a(f"v_add_u32 {vr(T[0])}, s{sT0}, {vr(T[0])}")
        a(f"v_mov_b32 {vr(T[1])}, {OOB}")
        a(f"v_cndmask_b32 {vr(vP)}, {vr(T[1])}, {vr(T[0])}, vcc")
        a(f"s_mov_b32 s{sPS}, -1")
        for w, (m, f, st_) in plan.items():
            a(f"s_cmp_eq_u32 s{sWAVE}, {w}")
            a(f"s_cselect_b32 s{sPS}, {st_}, s{sPS}")
    def main(kind, R):
        gu = kind == 'gu'
        NT = 2 if gu else 1
        NW = 3 if gu else 5
        pitchL = 384 if gu else 640
        acc, fx, fw, aX, aW, vP = R['acc'], R['fx'], R['fw'], R['aX'], R['aW'], R['vP']
        def reads(s, e1):
            L = []
            b, e = s >> 1, 2*(s & 1) + e1
            for tt in range(NT):
                L.append(f"ds_read_b128 {vr(fx[e1]+4*tt,4)}, {vr(aX+e)} offset:{xslot(b) - XRING + tt*4096}")
            slot = s % 4
            for t in range(NW):
                for u in range(2):
                    L.append(f"ds_read_b64_tr_b16 {vr(fw[e1]+4*t+2*u,2)}, {vr(aW + (slot >> 1)*NW + t)} "
                             f"offset:{(slot & 1)*24576 + (16*e1 + 4*u)*pitchL}")
            return L
        def mfmas(st_, first):
            L = []
            for t in range(NW):
                for tt in range(NT):
                    d = acc + 16*(tt*NW + t)
                    A, B = vr(fw[st_]+4*t, 4), vr(fx[st_]+4*tt, 4)
                    if kind == 'v': A, B = B, A
                    L.append(f"v_mfma_f32_32x32x16_bf16 {vr(d,16)}, {A}, {B}, {'0' if first else vr(d,16)}")
            return L
        def block(M, Rd):
            Rd = list(Rd)
            for m in M:
                a(m)
                for _ in range(2 if gu else 3):
                    if Rd: a.lds(Rd.pop(0), 'f')
            for r in Rd: a.lds(r, 'f')
        a("s_waitcnt lgkmcnt(0)")
        if OPT['prefetch']:
            if gu:
                a(f"s_bitcmp1_b32 s{sWAVE}, 0")
                a(f"s_cselect_b32 s{dW}, s{sWG}, s{sWU}")
                a(f"s_cselect_b32 s{dW+1}, s{sWG+1}, s{sWU+1}")
            else:
                a(f"s_mov_b32 s{dW}, s{sWQ}")
                a(f"s_mov_b32 s{dW+1}, s{sWQ+1}")
            a(f"s_cmp_eq_u32 s{sWAVE}, 5")
            a(f"s_cselect_b32 s{dW}, s{sXP}, s{dW}")
            a(f"s_cselect_b32 s{dW+1}, s{sXP+1}, s{dW+1}")
            a(f"s_mov_b32 s{dW+2}, {D*F*2 if gu else D*3*D*2}")
            a(f"s_cselect_b32 s{dW+2}, {S*D*2}, s{dW+2}")
            a(f"s_mov_b32 s{dW+3}, 0x00020000")
        srd(a, dWS, sWS, WS_SIZE)
        def pf(s):
            if not OPT['prefetch']: return
            if s not in [v[2] for v in pf_plan(gu).values()]: return
            lab = f"{name}_pf{kind}{s}"
            a(f"s_cmp_lg_u32 s{sPS}, {s}")
            a(f"s_cbranch_scc1 {lab}")
            a(f"buffer_load_dword {vr(vP+1)}, {vr(vP)}, {sr(dW,4)}, 0 offen")
            a.label(lab)
        pf(0)
        for s in range(NSTEP):
            a.wait(lg='all')
            if s <= LASTB: a("s_barrier")
            if s == 0: a("; @m p1_b0")
            if s == 4: a("; @m p1_b4")
            if s == 10: a("; @m p1_b10")
            if s == LASTB:
                a("; @m p1_last")
                if OPT['stagger']:
                    a(f"s_cmp_ge_u32 s{sWAVE}, 4")
                    a(f"s_cbranch_scc1 {name}_np{kind}")
                    a("s_setprio 1")
                    a.label(f"{name}_np{kind}")
            if s == 0:
                for r in reads(0, 0): a.lds(r, 'f')
            else:
                block(mfmas(1, False), reads(s, 0))
                if hook and s == 5: hook(kind, 0)
                pf(s)
            a.wait(lg='all')
            block(mfmas(0, s == 0), reads(s, 1))
        a.wait(lg='all')
        for m in mfmas(1, False): a(m)
        a("s_waitcnt vmcnt(0)")
        a("; @m p1_end")

    def regs(gu):
        rg = Regs(base, 168); R = {}
        R['vP'] = rg.alloc('vP', 2)
        R['aX'] = rg.alloc('aX', 4); R['aW'] = rg.alloc('aW', 6 if gu else 10)
        nx, nw = (8, 12) if gu else (4, 20)
        R['fx'] = [rg.alloc('fx0', nx, 2), rg.alloc('fx1', nx, 2)]
        R['fw'] = [rg.alloc('fw0', nw, 2), rg.alloc('fw1', nw, 2)]
        R['acc'] = rg.alloc('acc', 96 if gu else 80, 2)
        return R
    a(f"s_cmp_ge_u32 s{sCOL}, 6")
    a(f"s_cbranch_scc1 {name}_gu")
    R = regs(False)
    aX, aW, acc, pk = R['aX'], R['aW'], R['acc'], R['fw'][0]
    a(f"s_and_b32 s{sWM}, s{sWAVE}, 3")
    a(f"s_lshr_b32 s{sWN}, s{sWAVE}, 2")
    if OPT['prefetch']: prefetch_setup(False, R['vP'])
    ds_x_addr(aX, 5)
    a(f"v_lshrrev_b32 {vr(T[0])}, 5, {vr(vL)}")
    a(f"v_bfe_u32 {vr(T[1])}, {vr(vL)}, 2, 2")
    a(f"v_lshl_add_u32 {vr(T[0])}, {vr(T[0])}, 3, {vr(T[1])}")
    a(f"v_mul_u32_u24 {vr(T[0])}, 640, {vr(T[0])}")
    a(f"v_lshrrev_b32 {vr(T[1])}, 1, {vr(T[1])}")
    a(f"v_bfe_u32 {vr(T[2])}, {vr(vL)}, 4, 1")
    a(f"v_and_b32 {vr(T[3])}, 3, {vr(vL)}")
    a(f"v_lshl_add_u32 {vr(T[2])}, {vr(T[2])}, 2, {vr(T[3])}")
    a(f"v_lshlrev_b32 {vr(T[2])}, 2, {vr(T[2])}")
    a(f"s_mul_i32 s{sT0}, s{sWN}, 5")
    for t in range(5):
        a(f"s_add_u32 s{sT1}, s{sT0}, {t}")
        a(f"v_xor_b32 {vr(T[3])}, s{sT1}, {vr(T[1])}")
        a(f"v_lshl_add_u32 {vr(T[3])}, {vr(T[3])}, 6, {vr(T[0])}")
        a(f"s_cmp_ge_u32 s{sCOL}, 4")
        a(f"s_mov_b32 s{sT2}, {lut(t):#x}")
        a(f"s_cselect_b32 s{sT2}, 0x76543210, s{sT2}")
        a(f"v_bfe_u32 {vr(T[4])}, s{sT2}, {vr(T[2])}, 3")
        a(f"v_lshl_add_u32 {vr(aW+t)}, {vr(T[4])}, 3, {vr(T[3])}")
        a(f"v_add_u32 {vr(aW+5+t)}, 49152, {vr(aW+t)}")
    a(f"s_cbranch_scc1 {name}_v")

    main('qk', R)
    a(f"s_and_b32 s{sT0}, s{sCOL}, 1")
    a(f"s_lshl_b32 s{sT0}, s{sT0}, 1")
    a(f"s_add_u32 s{sT0}, s{sT0}, s{sWN}")
    a(f"s_mul_i32 s{sT0}, s{sT0}, {8*81920}")
    a(f"s_lshl_b32 s{sT1}, s{sRB}, 2")
    a(f"s_add_u32 s{sT1}, s{sT1}, s{sWM}")
    a(f"s_mul_i32 s{sT1}, s{sT1}, 1280")
    a(f"s_add_u32 s{sT0}, s{sT0}, s{sT1}")
    a(f"s_cmp_ge_u32 s{sCOL}, 2")
    a(f"s_cselect_b32 s{sT1}, {KF}, {QF}")
    a(f"s_cselect_b32 s{sC0}, 1.0, {f2u(QSCALE):#x}")
    a(f"s_mov_b32 s{sC0+1}, s{sC0}")
    a(f"s_add_u32 s{sT0}, s{sT0}, s{sT1}")
    a(f"v_lshlrev_b32 {vr(T[0])}, 4, {vr(vL)}")
    a(f"v_and_b32 {vr(T[1])}, 31, {vr(vL)}")
    a(f"v_lshlrev_b32 {vr(T[1])}, 3, {vr(T[1])}")
    a(f"v_lshrrev_b32 {vr(T[2])}, 5, {vr(vL)}")
    a(f"v_mul_u32_u24 {vr(T[2])}, 81920, {vr(T[2])}")
    a(f"v_add_u32 {vr(T[1])}, {vr(T[1])}, {vr(T[2])}")
    def scale_pack(slot, dst):
        b = acc + 4*slot
        a(f"v_pk_mul_f32 {vr(b,2)}, {vr(b,2)}, {sr(sC0,2)}")
        a(f"v_pk_mul_f32 {vr(b+2,2)}, {vr(b+2,2)}, {sr(sC0,2)}")
        a(f"v_cvt_pk_bf16_f32 {vr(dst)}, {vr(b)}, {vr(b+1)}")
        a(f"v_cvt_pk_bf16_f32 {vr(dst+1)}, {vr(b+2)}, {vr(b+3)}")
    for h in range(8):
        d = pk + 4*h
        scale_pack(UNIT_PAIRS[h][0], d); scale_pack(UNIT_PAIRS[h][1], d+2)
        a(f"s_add_u32 s{sT1}, s{sT0}, {h*81920}")
        a(f"buffer_store_dwordx4 {vr(d,4)}, {vr(T[0])}, {sr(dWS,4)}, s{sT1} offen{st}")
        if h & 1:
            d2 = pk + 32 + 2*(h >> 1)
            scale_pack(R_SLOTS[h >> 1], d2)
            a(f"s_add_u32 s{sT2}, s{sT0}, {(h-1)*81920}")
            a(f"buffer_store_dwordx2 {vr(d2,2)}, {vr(T[1])}, {sr(dWS,4)}, s{sT2} offen offset:1024{st}")
    done('qk')

    a.label(f"{name}_v")
    main('v', R)
    a(f"s_and_b32 s{sT0}, s{sCOL}, 1")
    a(f"s_lshl_b32 s{sT0}, s{sT0}, 1")
    a(f"s_add_u32 s{sT0}, s{sT0}, s{sWN}")
    a(f"s_mul_i32 s{sT0}, s{sT0}, {8*VH}")
    a(f"s_lshl_b32 s{sT1}, s{sRB}, 2")
    a(f"s_add_u32 s{sT1}, s{sT1}, s{sWM}")
    a(f"s_mul_i32 s{sT1}, s{sT1}, {VT}")
    a(f"s_add_u32 s{sT0}, s{sT0}, s{sT1}")
    a(f"s_add_u32 s{sT0}, s{sT0}, {VF}")
    if VROWS == 21:
        a(f"v_bfe_u32 {vr(T[0])}, {vr(vL)}, 2, 3")
        a(f"v_mul_u32_u24 {vr(T[0])}, {VH}, {vr(T[0])}")
        a(f"v_and_b32 {vr(T[1])}, 3, {vr(vL)}")
        a(f"v_mul_u32_u24 {vr(T[1])}, 336, {vr(T[1])}")
        a(f"v_add_u32 {vr(T[0])}, {vr(T[0])}, {vr(T[1])}")
        for i in range(4):
            a(f"v_mov_b32 {vr(pk+i)}, 0x3f803f80")
        a(f"buffer_store_dwordx4 {vr(pk,4)}, {vr(T[0])}, {sr(dWS,4)}, s{sT0} offen offset:320{st}")
    a(f"v_and_b32 {vr(T[1])}, 31, {vr(vL)}")
    a(f"v_lshrrev_b32 {vr(T[2])}, 5, {vr(vL)}")
    a(f"v_mul_u32_u24 {vr(T[2])}, {VROWS*16}, {vr(T[2])}")
    for t in range(5):
        a(f"v_add_u32 {vr(T[3])}, {32*t}, {vr(T[1])}")
        a(f"v_mul_u32_u24 {vr(T[4])}, 3277, {vr(T[3])}")
        a(f"v_lshrrev_b32 {vr(T[4])}, 16, {vr(T[4])}")
        a(f"v_mul_u32_u24 {vr(T[5])}, 20, {vr(T[4])}")
        a(f"v_sub_u32 {vr(T[3])}, {vr(T[3])}, {vr(T[5])}")
        a(f"v_mul_u32_u24 {vr(T[4])}, {VH}, {vr(T[4])}")
        a(f"v_lshl_add_u32 {vr(T[3])}, {vr(T[3])}, 4, {vr(T[4])}")
        a(f"v_add_u32 {vr(aW+t)}, {vr(T[3])}, {vr(T[2])}")
    for t in range(5):
        for p in range(2):
            d = pk + 4 + 4*((2*t + p) % 8)
            b = acc + 16*t + 8*p
            for i in range(4):
                a(f"v_cvt_pk_bf16_f32 {vr(d+i)}, {vr(b+2*i)}, {vr(b+2*i+1)}")
            a(f"buffer_store_dwordx4 {vr(d,4)}, {vr(aW+t)}, {sr(dWS,4)}, s{sT0} offen offset:{VROWS*32*p}{st}")
    done('v')

    a.label(f"{name}_gu")
    R = regs(True)
    aX, aW, acc, pk = R['aX'], R['aW'], R['acc'], R['fw'][0]
    a(f"s_and_b32 s{sWM}, s{sWAVE}, 1")
    a(f"s_lshr_b32 s{sWN}, s{sWAVE}, 1")
    if OPT['prefetch']: prefetch_setup(True, R['vP'])
    ds_x_addr(aX, 6)
    a(f"v_lshrrev_b32 {vr(T[0])}, 5, {vr(vL)}")
    a(f"v_bfe_u32 {vr(T[1])}, {vr(vL)}, 2, 2")
    a(f"v_lshl_add_u32 {vr(T[0])}, {vr(T[0])}, 3, {vr(T[1])}")
    a(f"v_mul_u32_u24 {vr(T[0])}, 384, {vr(T[0])}")
    a(f"v_bfe_u32 {vr(T[2])}, {vr(vL)}, 1, 1")
    a(f"v_mul_u32_u24 {vr(T[3])}, 12288, {vr(T[2])}")
    a(f"v_add_u32 {vr(T[0])}, {vr(T[0])}, {vr(T[3])}")
    a(f"v_lshrrev_b32 {vr(T[1])}, 1, {vr(T[1])}")
    a(f"v_lshl_add_u32 {vr(T[1])}, {vr(T[2])}, 1, {vr(T[1])}")
    a(f"v_bfe_u32 {vr(T[2])}, {vr(vL)}, 4, 1")
    a(f"v_lshl_add_u32 {vr(T[0])}, {vr(T[2])}, 4, {vr(T[0])}")
    a(f"v_and_b32 {vr(T[2])}, 1, {vr(vL)}")
    a(f"v_lshl_add_u32 {vr(T[0])}, {vr(T[2])}, 3, {vr(T[0])}")
    a(f"s_mul_i32 s{sT0}, s{sWN}, 3")
    for t in range(3):
        a(f"s_add_u32 s{sT1}, s{sT0}, {t}")
        a(f"v_xor_b32 {vr(T[3])}, s{sT1}, {vr(T[1])}")
        a(f"v_lshl_add_u32 {vr(aW+t)}, {vr(T[3])}, 5, {vr(T[0])}")
        a(f"v_add_u32 {vr(aW+3+t)}, 49152, {vr(aW+t)}")
    main('gu', R)
    a(f"s_lshl_b32 s{sT0}, s{sRB}, 1")
    a(f"s_add_u32 s{sT0}, s{sT0}, s{sWM}")
    a(f"s_mul_i32 s{sT0}, s{sT0}, {2*108}")
    a(f"s_sub_u32 s{sT1}, s{sCOL}, 6")
    a(f"s_mul_i32 s{sT1}, s{sT1}, 12")
    a(f"s_add_u32 s{sT0}, s{sT0}, s{sT1}")
    a(f"s_mul_i32 s{sT1}, s{sWN}, 3")
    a(f"s_add_u32 s{sT0}, s{sT0}, s{sT1}")
    a(f"s_lshl_b32 s{sT0}, s{sT0}, 10")
    a(f"s_add_u32 s{sT0}, s{sT0}, {HF}")
    a(f"s_add_u32 s{sT1}, s{sT0}, {108*1024}")
    a(f"s_mov_b32 s{sC0}, {f2u(-math.log2(math.e)):#x}")
    a(f"s_mov_b32 s{sC0+1}, s{sC0}")
    a(f"s_mov_b32 s{sC1}, 1.0")
    a(f"s_mov_b32 s{sC1+1}, 1.0")
    a(f"v_lshlrev_b32 {vr(T[0])}, 4, {vr(vL)}")
    order = [(tt, t) for t in range(3) for tt in range(2)]
    for n, (tt, t) in enumerate(order):
        b = acc + 16*(tt*3 + t)
        d = pk + 4*n
        gs = [b, b+2, b+8, b+10]; us = [b+4, b+6, b+12, b+14]
        for q in gs: a(f"v_pk_mul_f32 {vr(q,2)}, {vr(q,2)}, {sr(sC0,2)}")
        for q in gs:
            a(f"v_exp_f32 {vr(q)}, {vr(q)}"); a(f"v_exp_f32 {vr(q+1)}, {vr(q+1)}")
        for q in gs: a(f"v_pk_add_f32 {vr(q,2)}, {vr(q,2)}, {sr(sC1,2)}")
        for q in gs:
            a(f"v_rcp_f32 {vr(q)}, {vr(q)}"); a(f"v_rcp_f32 {vr(q+1)}, {vr(q+1)}")
        for q, u in zip(gs, us): a(f"v_pk_mul_f32 {vr(q,2)}, {vr(q,2)}, {vr(u,2)}")
        for i, q in enumerate(gs): a(f"v_cvt_pk_bf16_f32 {vr(d+i)}, {vr(q)}, {vr(q+1)}")
        a(f"buffer_store_dwordx4 {vr(d,4)}, {vr(T[0])}, {sr(dWS,4)}, s{sT1 if tt else sT0} offen offset:{1024*t}{st}")
    done('gu')

def misc(a, name, vL, T, base, st, done, hook=None):
    rg = Regs(base, 168)
    zz = rg.alloc('z', 4); aR = rg.alloc('aR', 3); vA = rg.alloc('vA', 20)
    gw = rg.alloc('gw', 20, 2); xregs = [rg.alloc(f'x{q}', 20, 2) for q in range(4)]
    fr = gw
    sU, sMI = sWM, sWN
    sKS, sHF, sSRC, sDST, sDS2 = 60, 61, 62, 63, 64
    a(f"s_lshl_b32 s{sMI}, s{sXCD}, 1")
    a(f"s_add_u32 s{sMI}, s{sMI}, s{sSLOT}")
    a(f"s_sub_u32 s{sMI}, s{sMI}, 30")
    a(f"s_mul_i32 s{sU}, s{sMI}, 12")
    a(f"s_add_u32 s{sU}, s{sU}, s{sWAVE}")
    a.vm = []; a.lg = []
    for i in range(10):
        a(f"v_add_u32 {vr(T[2])}, {64*i}, {vr(vL)}")
        a(f"v_mul_u32_u24 {vr(T[3])}, 1639, {vr(T[2])}")
        a(f"v_lshrrev_b32 {vr(T[3])}, 16, {vr(T[3])}")
        a(f"v_mul_u32_u24 {vr(T[4])}, 40, {vr(T[3])}")
        a(f"v_sub_u32 {vr(T[4])}, {vr(T[2])}, {vr(T[4])}")
        a(f"v_and_b32 {vr(T[5])}, 2, {vr(T[3])}")
        a(f"v_lshlrev_b32 {vr(T[5])}, 1, {vr(T[5])}")
        a(f"v_xor_b32 {vr(T[4])}, {vr(T[4])}, {vr(T[5])}")
        a(f"v_lshlrev_b32 {vr(T[4])}, 4, {vr(T[4])}")
        a(f"v_mul_u32_u24 {vr(T[5])}, 1280, {vr(T[3])}")
        a(f"v_add_u32 {vr(vA+i)}, {vr(T[5])}, {vr(T[4])}")
        a(f"v_lshrrev_b32 {vr(T[5])}, 2, {vr(T[3])}")
        a(f"v_mul_u32_u24 {vr(T[5])}, {16*1280}, {vr(T[5])}")
        a(f"v_add_u32 {vr(vA+10+i)}, {vr(vA+i)}, {vr(T[5])}")
    a(f"v_lshrrev_b32 {vr(T[2])}, 5, {vr(vL)}")
    a(f"v_bfe_u32 {vr(T[3])}, {vr(vL)}, 2, 2")
    a(f"v_lshl_add_u32 {vr(T[2])}, {vr(T[2])}, 2, {vr(T[3])}")
    a(f"v_mul_u32_u24 {vr(T[2])}, 640, {vr(T[2])}")
    a(f"v_bfe_u32 {vr(T[4])}, {vr(vL)}, 4, 1")
    a(f"v_and_b32 {vr(T[5])}, 3, {vr(vL)}")
    a(f"v_lshl_add_u32 {vr(T[4])}, {vr(T[4])}, 2, {vr(T[5])}")
    a(f"v_lshl_add_u32 {vr(T[2])}, {vr(T[4])}, 3, {vr(T[2])}")
    a(f"s_mul_i32 s{sWW}, s{sWAVE}, 10240")
    a(f"v_add_u32 {vr(T[2])}, s{sWW}, {vr(T[2])}")
    a(f"v_lshrrev_b32 {vr(T[3])}, 1, {vr(T[3])}")
    a(f"v_lshl_add_u32 {vr(aR)}, {vr(T[3])}, 6, {vr(T[2])}")
    a(f"v_xor_b32 {vr(T[3])}, 1, {vr(T[3])}")
    a(f"v_lshl_add_u32 {vr(aR+1)}, {vr(T[3])}, 6, {vr(T[2])}")
    a(f"v_lshlrev_b32 {vr(aR+2)}, 4, {vr(vL)}")
    a("s_waitcnt lgkmcnt(0)")
    srd(a, dX, sXP, S*D*2)
    srd(a, dWS, sWS, WS_SIZE)
    if hook: hook('m', 0)
    srd(a, dG, sGW, D*2)
    a.label(f"{name}_unit")
    a(f"s_lshr_b32 s{sKS}, s{sU}, 1")
    a(f"s_and_b32 s{sHF}, s{sU}, 1")
    a(f"s_cmp_ge_u32 s{sKS}, 108")
    a(f"s_cbranch_scc1 {name}_unit_wo")
    srd(a, dW, sWD, F*D*2)
    a(f"s_mul_i32 s{sSRC}, s{sKS}, {16*1280}")
    a(f"s_mul_i32 s{sDST}, s{sHF}, {10*110592}")
    a(f"s_lshl_b32 s{sT0}, s{sKS}, 10")
    a(f"s_add_u32 s{sDST}, s{sDST}, s{sT0}")
    a(f"s_add_u32 s{sDST}, s{sDST}, {WDF}")
    a(f"s_mov_b32 s{sDS2}, 110592")
    a(f"s_branch {name}_unit_plain")
    a.label(f"{name}_unit_wo")
    srd(a, dW, sWO, D*D*2)
    a(f"s_sub_u32 s{sKS}, s{sKS}, 108")
    a(f"s_mul_i32 s{sDST}, s{sHF}, {10*40960}")
    a(f"s_lshl_b32 s{sT0}, s{sKS}, 10")
    a(f"s_add_u32 s{sDST}, s{sDST}, s{sT0}")
    a(f"s_add_u32 s{sDST}, s{sDST}, {WOF}")
    a(f"s_mov_b32 s{sDS2}, 40960")
    a(f"s_mul_i32 s{sSRC}, s{sKS}, {20*1280}")
    a(f"s_cmp_lt_u32 s{sKS}, 32")
    a(f"s_cbranch_scc1 {name}_unit_plain")
    a(f"s_sub_u32 s{sKS}, s{sKS}, 32")
    a(f"s_mul_i32 s{sSRC}, s{sKS}, {80*1280}")
    a(f"s_add_u32 s{sSRC}, s{sSRC}, {16*1280}")
    def unit_dma(b):
        a(f"s_mul_i32 s{sT0}, s{sHF}, 640")
        a(f"s_add_u32 s{sSRC}, s{sSRC}, s{sT0}")
        for i in range(10):
            a(f"s_add_u32 m0, s{sWW}, {1024*i}")
            a("s_nop 0")
            a(f"buffer_load_dwordx4 {vr(b+i)}, {sr(dW,4)}, s{sSRC} offen lds")
    unit_dma(vA + 10)
    a(f"s_branch {name}_unit_go")
    a.label(f"{name}_unit_plain")
    unit_dma(vA)
    a.label(f"{name}_unit_go")
    a("s_waitcnt vmcnt(0)")
    for n in range(10):
        for u in range(2):
            a.lds(f"ds_read_b64_tr_b16 {vr(fr+4*n+2*u,2)}, {vr(aR + (n & 1))} offset:{128*(n >> 1) + u*8*640}", n)
        if n >= 4:
            a.wait(lg=n-4)
            a(f"buffer_store_dwordx4 {vr(fr+4*(n-4),4)}, {vr(aR+2)}, {sr(dWS,4)}, s{sDST} offen{st}")
            a(f"s_add_u32 s{sDST}, s{sDST}, s{sDS2}")
    for n in range(6, 10):
        a.wait(lg=n)
        a(f"buffer_store_dwordx4 {vr(fr+4*n,4)}, {vr(aR+2)}, {sr(dWS,4)}, s{sDST} offen{st}")
        a(f"s_add_u32 s{sDST}, s{sDST}, s{sDS2}")
    a(f"s_add_u32 s{sU}, s{sU}, 192")
    a(f"s_cmp_lt_u32 s{sU}, 296")
    a(f"s_cbranch_scc1 {name}_unit")
    a(f"s_cmp_ge_u32 s{sWAVE}, 8")
    a(f"s_cbranch_scc1 {name}_misc_done")
    a(f"s_lshl_b32 s{sU}, s{sMI}, 3")
    a(f"s_add_u32 s{sU}, s{sU}, s{sWAVE}")
    a(f"v_and_b32 {vr(T[0])}, 15, {vr(vL)}")
    a(f"v_lshlrev_b32 {vr(T[0])}, 4, {vr(T[0])}")
    a("s_waitcnt vmcnt(0)")
    a.vm = []
    for i in range(5):
        a.vmem(f"buffer_load_dwordx4 {vr(gw+4*i,4)}, {vr(T[0])}, {sr(dG,4)}, 0 offen offset:{256*i}", 'gw')
    a(f"v_lshrrev_b32 {vr(T[1])}, 4, {vr(vL)}")
    a(f"v_mul_u32_u24 {vr(T[2])}, 1280, {vr(T[1])}")
    a(f"v_add_u32 {vr(T[0])}, {vr(T[0])}, {vr(T[2])}")
    for q in range(4):
        a(f"s_lshl_b32 s{sT0}, s{sU}, 4")
        a(f"s_add_u32 s{sT0}, s{sT0}, {4*q}")
        a(f"s_mul_i32 s{sT0}, s{sT0}, 1280")
        for i in range(5):
            a.vmem(f"buffer_load_dwordx4 {vr(xregs[q]+4*i,4)}, {vr(T[0])}, {sr(dX,4)}, s{sT0} offen offset:{256*i}", ('gx', q))
    for q in range(4):
        a.wait(vm=('gx', q))
        a(f"v_mov_b32 {vr(zz+q)}, 0")
        for i in range(20):
            a(f"v_dot2_f32_bf16 {vr(zz+q)}, {vr(xregs[q]+i)}, {vr(gw+i)}, {vr(zz+q)}")
    a.nop(3)
    for sh in ("row_ror:8", "row_ror:4", "row_ror:2", "row_ror:1"):
        for q in range(4):
            a(f"v_add_f32_dpp {vr(zz+q)}, {vr(zz+q)}, {vr(zz+q)} {sh} row_mask:0xf bank_mask:0xf")
    a(f"v_and_b32 {vr(T[2])}, 15, {vr(vL)}")
    for q in range(1, 4):
        a(f"v_cmp_eq_u32 vcc, {q}, {vr(T[2])}")
        a("s_nop 1")
        a(f"v_cndmask_b32 {vr(zz)}, {vr(zz)}, {vr(zz+q)}, vcc")
    a(f"v_mul_f32 {vr(zz)}, {f2u(-math.log2(math.e)):#x}, {vr(zz)}")
    a(f"v_exp_f32 {vr(zz)}, {vr(zz)}")
    a("s_nop 0")
    a(f"v_add_f32 {vr(zz)}, 1.0, {vr(zz)}")
    a(f"v_rcp_f32 {vr(zz)}, {vr(zz)}")
    a(f"v_lshl_add_u32 {vr(T[3])}, {vr(T[2])}, 2, {vr(T[1])}")
    a(f"v_lshlrev_b32 {vr(T[3])}, 2, {vr(T[3])}")
    a(f"v_cmp_gt_u32 vcc, 4, {vr(T[2])}")
    a(f"v_mov_b32 {vr(T[5])}, {OOB}")
    a("s_nop 0")
    a(f"v_cndmask_b32 {vr(T[3])}, {vr(T[5])}, {vr(T[3])}, vcc")
    a(f"s_lshl_b32 s{sT0}, s{sU}, 6")
    a(f"s_add_u32 s{sT0}, s{sT0}, {GG}")
    a(f"buffer_store_dword {vr(zz)}, {vr(T[3])}, {sr(dWS,4)}, s{sT0} offen{st}")
    a.label(f"{name}_misc_done")
    done()

def emit_k1(name, st=""):
    a = Asm()
    a.raw(f".globl {name}\n.p2align 8\n.type {name},@function\n{name}:")
    vL = 1; T = list(range(2, 8)); base = 8
    entry(a, name, vL, T[0])
    a(f"s_cmp_ge_u32 s{sSLOT}, 30")
    a(f"s_cbranch_scc1 {name}_misc")
    a(f"s_cmp_lt_u32 s{sWAVE}, 8")
    a(f"s_cbranch_scc1 {name}_main")
    loader(a, name, vL, T, base, lambda: a("s_endpgm"))
    a.label(f"{name}_main")
    compute(a, name, vL, T, base, st, lambda k: a("s_endpgm"))
    a.label(f"{name}_misc")
    misc(a, name, vL, T, base, st, lambda: None)
    a.label(f"{name}_end")
    a("s_endpgm")
    return a.text(), kd(name, 168), 163840
```

```python
from asmlib import *
from common import *
from p1 import (sWS, sOUT, dWS, dG, sXCD, sSLOT, sWAVE, sCOL, sRB, sT0, sT1, sT2, sT3, sHW)

KS = [0, 20480, 61440, 0]
VS = [131072, 40960, 81920, 131072]
QS = 151552
CTR = 161792
XCH = 61440
RED1, RED2 = 20480, 110592
LDS = 163840
sHEAD, sQB, sKB, sVB, sQG, sKH, sTB, sCG, sKO, sL5, sOB, sI = 4, 5, 6, 7, 8, 9, 10, 11, 12, 13, 14, 15
sEX = 16
sM0 = 18
sM1 = 46
sPUB = 45
sTO = 48
sDBG = 96
OPT = dict(helper=True, publish_t=2, tail=True)
BAR = (2, 15, 23, 27, 29)
NE, NL = 7, 14
def blk(b): return RED1 + 5120*b if b < 8 else RED2 + 5120*(b - 8)
WBLK = [QS, QS + 5120, 105472, 90112, 95232, 100352] + [blk(3*a_ + i) for a_ in range(4) for i in (1, 2)]
OLO, OHI = 0, 131072
sWB, sFO = 50, 51
dO = 24

def decode(a):
    a(f"s_lshr_b32 s{sT0}, s{sSLOT}, 3")
    a(f"s_lshl_b32 s{sHEAD}, s{sXCD}, 2")
    a(f"s_add_u32 s{sHEAD}, s{sHEAD}, s{sT0}")
    a(f"s_and_b32 s{sQB}, s{sSLOT}, 7")
    a(f"s_mul_i32 s{sKB}, s{sHEAD}, 81920")
    a(f"s_add_u32 s{sVB}, s{sKB}, {VF}")
    assert VH == 81920 and QF == 0

def out_tile(a):
    a(f"s_lshr_b32 s{sTB}, s{sXCD}, 1")
    a(f"s_lshl_b32 s{sTB}, s{sTB}, 4")
    a(f"s_lshr_b32 s{sT0}, s{sSLOT}, 1")
    a(f"s_add_u32 s{sTB}, s{sTB}, s{sT0}")
    a(f"s_and_b32 s{sCG}, s{sXCD}, 1")
    a(f"s_lshl_b32 s{sCG}, s{sCG}, 1")
    a(f"s_and_b32 s{sT0}, s{sSLOT}, 1")
    a(f"s_add_u32 s{sCG}, s{sCG}, s{sT0}")
    a(f"s_mul_i32 s{sWB}, s{sCG}, {5*40960}")
    a(f"s_add_u32 s{sWB}, s{sWB}, {WOF}")

def poll(a, lab, vaddr, vtmp, want, srd_=dWS, soff="0"):
    a(f"s_mov_b32 s{sTO}, 0x4000")
    a.label(lab)
    a(f"buffer_load_dword {vr(vtmp)}, {vr(vaddr)}, {sr(srd_,4)}, {soff} offen sc1")
    a("s_waitcnt vmcnt(0)")
    a(f"v_cmp_ne_u32 vcc, {want}, {vr(vtmp)}")
    a(f"s_cbranch_vccz {lab}_ok")
    a("s_sleep 2")
    a(f"s_sub_u32 s{sTO}, s{sTO}, 1")
    a(f"s_cbranch_scc0 {lab}")
    a.label(f"{lab}_ok")
    a.vm = []

def publish(a, lab, vL, T, nwaves, st, fused):
    if not fused: return
    a("s_waitcnt vmcnt(0)")
    a(f"v_mov_b32 {vr(T[0])}, {CTR}")
    a(f"v_mov_b32 {vr(T[1])}, 1")
    a("s_mov_b64 exec, 1")
    a(f"ds_add_rtn_u32 {vr(T[2])}, {vr(T[0])}, {vr(T[1])}")
    a("s_mov_b64 exec, -1")
    flag_addr(a, vL, T[0], T[3])
    a("s_waitcnt lgkmcnt(0)")
    a(f"v_readfirstlane_b32 s{sT0}, {vr(T[2])}")
    a("s_nop 3")
    a(f"s_cmp_lg_u32 s{sT0}, {nwaves-1}")
    a(f"s_cbranch_scc1 {lab}")
    a(f"buffer_store_dword {vr(T[1])}, {vr(T[0])}, {sr(dWS,4)}, s{sPUB} offen sc1")
    a.label(lab)

def flag_addr(a, vL, dst, tmp):
    a(f"v_lshlrev_b32 {vr(dst)}, 10, {vr(vL)}")
    a(f"s_cmp_lt_u32 s{sPUB}, {FH}")
    a(f"s_cselect_b32 s{sT1}, 8, 1")
    a(f"v_mov_b32 {vr(tmp)}, {OOB}")
    a(f"v_cmp_gt_u32 vcc, s{sT1}, {vr(vL)}")
    a("s_nop 1")
    a(f"v_cndmask_b32 {vr(dst)}, {vr(tmp)}, {vr(dst)}, vcc")

def reset_flags(a, name, vL, T):
    a(f"s_lshl_b32 s{sT0}, s{sCOL}, 7")
    a(f"s_lshl_b32 s{sT1}, s{sRB}, 2")
    a(f"s_add_u32 s{sPUB}, s{sT0}, s{sT1}")
    a(f"s_add_u32 s{sPUB}, s{sPUB}, {FQ}")
    a(f"s_cmp_lt_u32 s{sCOL}, 6")
    a(f"s_cbranch_scc1 {name}_pubq")
    a(f"s_lshl_b32 s{sT0}, s{sRB}, 7")
    a(f"s_lshl_b32 s{sT1}, s{sCOL}, 2")
    a(f"s_add_u32 s{sPUB}, s{sT0}, s{sT1}")
    a(f"s_add_u32 s{sPUB}, s{sPUB}, {FH - 24}")
    a.label(f"{name}_pubq")
    a(f"s_cmp_lt_u32 s{sSLOT}, 30")
    a(f"s_cbranch_scc1 {name}_pubg")
    a(f"s_lshl_b32 s{sT0}, s{sXCD}, 1")
    a(f"s_add_u32 s{sT0}, s{sT0}, s{sSLOT}")
    a(f"s_lshl_b32 s{sT0}, s{sT0}, 2")
    a(f"s_add_u32 s{sPUB}, s{sT0}, {FM - 120}")
    a.label(f"{name}_pubg")
    a(f"s_cmp_lg_u32 s{sWAVE}, 0")
    a(f"s_cbranch_scc1 {name}_noreset")
    a(f"v_mov_b32 {vr(T[0])}, {CTR}")
    for i in range(4): a(f"v_mov_b32 {vr(T[2]+i)}, 0")
    a(f"ds_write_b32 {vr(T[0])}, {vr(T[2])}")
    a(f"v_lshlrev_b32 {vr(T[0])}, 4, {vr(vL)}")
    a("s_waitcnt lgkmcnt(0)")
    a(f"s_cmp_ge_u32 s2, {NRESET}")
    a(f"s_cbranch_scc1 {name}_noreset")
    srd(a, dWS, sWS, WS_SIZE)
    srd(a, dG, sDBG, 256)
    a(f"s_lshl_b32 s{sT0}, s2, 10")
    a(f"s_add_u32 s{sT0}, s{sT0}, {FL}")
    a(f"buffer_store_dwordx4 {vr(T[2],4)}, {vr(T[0])}, {sr(dWS,4)}, s{sT0} offen sc1")
    a.label(f"{name}_noreset")

NRESET = 20
def count_in(a, lab, T, later):
    a(f"s_cmp_lg_u32 s{sWAVE}, 0")
    a(f"s_cbranch_scc1 {lab}")
    a(f"s_cmp_ge_u32 s2, {NRESET}")
    a(f"s_cbranch_scc1 {lab}")
    srd(a, dG, sDBG, 256)
    a(f"v_mov_b32 {vr(T[0])}, 0")
    a(f"v_mov_b32 {vr(T[1])}, 1")
    a(f"s_waitcnt vmcnt({later})")
    a("s_mov_b64 exec, 1")
    a(f"buffer_atomic_add {vr(T[1])}, {vr(T[0])}, {sr(dG,4)}, 0 offen")
    a("s_mov_b64 exec, -1")
    a.label(lab)

def wait_cleared(a, lab, T, only):
    a(f"s_cmp_lg_u32 s{sWAVE}, {only}")
    a(f"s_cbranch_scc1 {lab}_skip")
    srd(a, dG, sDBG, 256)
    a(f"v_mov_b32 {vr(T[0])}, 0")
    keep = list(a.vm)
    poll(a, lab, T[0], T[1], NRESET, dG)
    a.vm = keep
    a.label(f"{lab}_skip")

def attention(a, name, vL, T, base, st, fused):
    rg = Regs(base, 168)
    v16 = rg.alloc('v16'); vB8 = rg.alloc('vB8'); vVo = rg.alloc('vVo')
    aK = [rg.alloc('aK0'), rg.alloc('aK1')]; aKb = [rg.alloc('aKb0'), rg.alloc('aKb1')]
    aV = [rg.alloc('aV0'), rg.alloc('aV1'), rg.alloc('aV2')]
    vG = rg.alloc('vG')
    tail = fused and OPT['tail']
    Qa = [rg.alloc('Qa0', 4, 2), rg.alloc('Qa1', 4, 2)]; Qb = [rg.alloc('Qb0', 2, 2), rg.alloc('Qb1', 2, 2)]
    Ka = [rg.alloc('Ka0', 4, 2), rg.alloc('Ka1', 4, 2)]; Kb = [rg.alloc('Kb0', 2, 2), rg.alloc('Kb1', 2, 2)]
    Vf = [rg.alloc('V0', 8, 2), rg.alloc('V1', 8, 2)]
    P = [rg.alloc('P0', 8, 2), rg.alloc('P1', 8, 2)]
    Sx = [rg.alloc('S0', 16, 2), rg.alloc('S1', 16, 2)]
    O = [rg.alloc('O0', 16, 2), rg.alloc('O1', 16, 2)]
    WE = rg.alloc('WE', 4*NE, 2)
    a.vm = []; a.lg = []
    a("s_setprio 0")
    decode(a)
    a(f"s_and_b32 s{sQG}, s{sWAVE}, 3")
    a(f"s_lshr_b32 s{sKH}, s{sWAVE}, 2")
    a(f"s_add_u32 s{sKB}, s{sKB}, {KF}")
    a(f"s_mov_b32 s{sEX}, 0xfffff")
    a(f"s_mov_b32 s{sEX+1}, 0xfffff")
    a(f"v_lshlrev_b32 {vr(v16)}, 4, {vr(vL)}")
    a(f"v_and_b32 {vr(T[0])}, 31, {vr(vL)}")
    a(f"v_lshrrev_b32 {vr(T[1])}, 5, {vr(vL)}")
    a(f"v_lshlrev_b32 {vr(T[2])}, 2, {vr(T[1])}")
    a(f"v_lshl_add_u32 {vr(vB8)}, {vr(T[0])}, 3, {vr(T[2])}")
    a(f"v_cmp_eq_u32 vcc, 0, {vr(T[1])}")
    a(f"v_mov_b32 {vr(T[2])}, 0x3f80")
    a(f"v_mov_b32 {vr(T[3])}, 0x3f803f80")
    a(f"v_cndmask_b32 {vr(Kb[0]+1)}, {vr(T[2])}, {vr(T[3])}, vcc")
    a(f"v_cmp_eq_u32 vcc, 20, {vr(T[0])}")
    a(f"v_mov_b32 {vr(Kb[1]+1)}, {vr(Kb[0]+1)}")
    a(f"v_mov_b32 {vr(Qb[0]+1)}, 0")
    a(f"v_mov_b32 {vr(Qb[1]+1)}, 0")
    a(f"v_cndmask_b32 {vr(T[2])}, 0, {vr(T[3])}, vcc")
    for i in range(16): a(f"v_mov_b32 {vr(Vf[0]+i)}, {vr(T[2])}")
    assert Vf[1] == Vf[0] + 8
    a(f"s_mul_i32 s{sT1}, s{sKH}, {8*1280}")
    a(f"v_add_u32 {vr(aK[0])}, s{sT1}, {vr(v16)}")
    a(f"v_add_u32 {vr(aKb[0])}, s{sT1}, {vr(vB8)}")
    a(f"v_add_u32 {vr(aKb[0])}, 1024, {vr(aKb[0])}")
    a(f"v_add_u32 {vr(aK[1])}, {KS[2]}, {vr(aK[0])}")
    a(f"v_add_u32 {vr(aKb[1])}, {KS[2]}, {vr(aKb[0])}")
    a(f"v_mul_u32_u24 {vr(T[3])}, 20, {vr(T[1])}")
    a(f"v_add_lshl_u32 {vr(vVo)}, {vr(T[0])}, {vr(T[3])}, 4")
    a(f"v_add_u32 {vr(T[3])}, s{sT1}, {vr(vVo)}")
    for i in range(3): a(f"v_add_u32 {vr(aV[i])}, {VS[i]}, {vr(T[3])}")
    a(f"s_mul_i32 s{sT1}, s{sQG}, 2560")
    a(f"s_add_u32 s{sT1}, s{sT1}, {QS}")
    a(f"v_add_u32 {vr(T[4])}, s{sT1}, {vr(v16)}")
    a(f"v_add_u32 {vr(T[5])}, s{sT1}, {vr(vB8)}")

    def qk(q, kbuf):
        return [f"v_mfma_f32_32x32x16_bf16 {vr(Sx[q],16)}, {vr(Ka[kbuf],4)}, {vr(Qa[q],4)}, 0",
                f"v_mfma_f32_32x32x8_bf16 {vr(Sx[q],16)}, {vr(Kb[kbuf],2)}, {vr(Qb[q],2)}, {vr(Sx[q],16)}"]
    def pv(q, vbuf, first):
        return [f"v_mfma_f32_32x32x16_bf16 {vr(O[q],16)}, {vr(Vf[vbuf],4)}, {vr(P[q],4)}, {'0' if first else vr(O[q],16)}",
                f"v_mfma_f32_32x32x16_bf16 {vr(O[q],16)}, {vr(Vf[vbuf]+4,4)}, {vr(P[q]+4,4)}, {vr(O[q],16)}"]
    def max16(src, dst, init=None):
        a(f"v_max3_f32 {vr(dst)}, {vr(src)}, {vr(src+1)}, {vr(src+2 if init is None else init)}")
        i = 3 if init is None else 2
        while i < 16:
            if i + 1 < 16:
                a(f"v_max3_f32 {vr(dst)}, {vr(dst)}, {vr(src+i)}, {vr(src+i+1)}"); i += 2
            else:
                a(f"v_max_f32 {vr(dst)}, {vr(dst)}, {vr(src+i)}"); i += 1
    def set_shift(m, q):
        t0, t1 = T[3], T[4]
        a(f"v_mov_b32 {vr(t0)}, {vr(m)}")
        a("s_nop 1")
        a(f"v_permlane32_swap_b32 {vr(m)}, {vr(t0)}")
        a(f"v_max_f32 {vr(m)}, {vr(m)}, {vr(t0)}")
        a(f"v_sub_f32 {vr(m)}, 0, {vr(m)}")
        a(f"v_and_b32 {vr(t0)}, 0xffff0000, {vr(m)}")
        a(f"v_sub_f32 {vr(m)}, {vr(m)}, {vr(t0)}")
        a(f"v_and_b32 {vr(t1)}, 0xffff0000, {vr(m)}")
        a(f"v_sub_f32 {vr(m)}, {vr(m)}, {vr(t1)}")
        a(f"v_cmp_gt_u32 vcc, 32, {vr(vL)}")
        a(f"v_lshrrev_b32 {vr(t0)}, 16, {vr(t0)}")
        a(f"v_or_b32 {vr(t0)}, {vr(t0)}, {vr(t1)}")
        a(f"v_lshrrev_b32 {vr(m)}, 16, {vr(m)}")
        a(f"v_cndmask_b32 {vr(Qb[q]+1)}, {vr(m)}, {vr(t0)}, vcc")
    def kread(t):
        c, i = t >> 3, t & 7
        s1 = 1 if c == 2 else 0
        off = (0 if s1 else KS[c]) + i*1280
        return [f"ds_read_b128 {vr(Ka[t&1],4)}, {vr(aK[s1])} offset:{off}",
                f"ds_read_b32 {vr(Kb[t&1])}, {vr(aKb[s1])} offset:{off}"]
    def vread(t):
        c, i = t >> 3, t & 7
        return [f"ds_read_b128 {vr(Vf[t&1]+4*p,4)}, {vr(aV[c % 3])} offset:{i*1280 + 640*p}" for p in range(2)]
    def valu(q):
        L = []
        for i in range(8):
            L.append(f"v_exp_f32 {vr(Sx[q]+2*i)}, {vr(Sx[q]+2*i)}")
            L.append(f"v_exp_f32 {vr(Sx[q]+2*i+1)}, {vr(Sx[q]+2*i+1)}")
            if i: L.append(f"v_cvt_pk_bf16_f32 {vr(P[q]+i-1)}, {vr(Sx[q]+2*i-2)}, {vr(Sx[q]+2*i-1)}")
        L.append(f"v_cvt_pk_bf16_f32 {vr(P[q]+7)}, {vr(Sx[q]+14)}, {vr(Sx[q]+15)}")
        return L
    def phase(q, M, Kr, Vr):
        V = valu(q)
        cuts = [0, 5, 11, 17, 24]
        M = list(M) + [None]*(4 - len(M))
        for k in range(4):
            if M[k]: a(M[k])
            if k == 0:
                for r in Kr: a.lds(r, 'f')
            if k == 1 and Vr:
                a(f"s_mov_b64 exec, {sr(sEX,2)}")
                for r in Vr: a.lds(r, 'f')
                a("s_mov_b64 exec, -1")
            for v in V[cuts[k]:cuts[k+1]]: a(v)

    a("; @m a_pre")
    a("s_barrier")
    a("; @m a_b0")
    for q in range(2):
        a(f"ds_read_b128 {vr(Qa[q],4)}, {vr(T[4])} offset:{1280*q}")
        a(f"ds_read_b32 {vr(Qb[q])}, {vr(T[5])} offset:{1280*q + 1024}")
    a(f"ds_read_b128 {vr(Ka[1],4)}, {vr(v16)} offset:{KS[0]}")
    a(f"ds_read_b32 {vr(Kb[1])}, {vr(vB8)} offset:{KS[0] + 1024}")
    for r in kread(0): a(r)
    a("s_waitcnt lgkmcnt(2)")
    for q in range(2):
        for m in qk(q, 1): a(m)
    a.nop(10)
    max16(Sx[0], T[1]); set_shift(T[1], 0)
    max16(Sx[1], T[2])
    a("s_waitcnt lgkmcnt(0)")
    M = qk(0, 0)
    a(M[0]); a(M[1])
    set_shift(T[2], 1)
    NT = 32
    for t in range(NT):
        if t in BAR:
            a("s_barrier")
        if fused and t == OPT['publish_t']:
            a(f"s_cmp_lt_u32 s{sPUB}, {FH}")
            a(f"s_cbranch_scc1 {name}_latepub")
            a(f"s_cmp_ge_u32 s{sPUB}, {FM}")
            a(f"s_cbranch_scc1 {name}_latepub")
            publish(a, f"{name}_latepub", vL, T, 8, st, fused)
        if tail and t == 16:
            out_tile(a)
            a(f"s_lshl_b32 s{sT0}, s{sQB}, 2")
            a(f"s_add_u32 s{sT0}, s{sT0}, s{sQG}")
            a(f"s_lshl_b32 s{sT0}, s{sT0}, 1")
            a(f"s_add_u32 s{sT0}, s{sT0}, s{sKH}")
            a(f"s_lshl_b32 s{sT0}, s{sT0}, 7")
            a(f"s_lshl_b32 s{sFO}, s{sHEAD}, 2")
            a(f"s_add_u32 s{sFO}, s{sFO}, s{sT0}")
            a(f"s_add_u32 s{sFO}, s{sFO}, {FO}")
            a(f"s_add_u32 s{sT0}, s{sT0}, {GG}")
            a(f"v_and_b32 {vr(T[0])}, 31, {vr(vL)}")
            a(f"v_lshlrev_b32 {vr(T[0])}, 2, {vr(T[0])}")
            a(f"buffer_load_dword {vr(vG)}, {vr(T[0])}, {sr(dWS,4)}, s{sT0} offen")
            a(f"s_mul_i32 s{sT0}, s{sWAVE}, 40960")
            a(f"s_add_u32 s{sWB}, s{sWB}, s{sT0}")
        if tail and t == 26:
            a(f"s_cmp_ge_u32 s{sWAVE}, 5")
            a(f"s_cbranch_scc1 {name}_noearly")
            for k in range(NE):
                if k == 4: a(f"s_add_u32 s{sT0}, s{sWB}, 4096")
                a(f"buffer_load_dwordx4 {vr(WE+4*k,4)}, {vr(v16)}, {sr(dWS,4)}, s{sWB if k < 4 else sT0} offen offset:{1024*(k % 4)}")
            a.label(f"{name}_noearly")
        M = qk(1, t & 1) + (pv(1, (t-1) & 1, t == 1) if t else [])
        phase(0, M, kread(t+1) if t + 1 < NT else [], vread(t))
        a.wait(lg='all')
        M = (qk(0, (t+1) & 1) if t + 1 < NT else []) + pv(0, t & 1, t == 0)
        phase(1, M, [], [])
    a("s_nop 0")
    for m in pv(1, (NT-1) & 1, False): a(m)
    a("; @m a_end")
    a(f"s_lshl_b32 s{sT0}, s{sQG}, 1")
    a(f"s_add_u32 s{sT1}, s{sT0}, s{sKH}")
    a(f"s_xor_b32 s{sT2}, s{sT1}, 1")
    a(f"s_mul_i32 s{sT2}, s{sT2}, 3072")
    a(f"s_add_u32 s{sT2}, s{sT2}, {XCH}")
    a(f"v_add_u32 {vr(T[0])}, s{sT2}, {vr(v16)}")
    a(f"s_mul_i32 s{sT2}, s{sT1}, 3072")
    a(f"s_add_u32 s{sT2}, s{sT2}, {XCH}")
    a(f"v_add_u32 {vr(T[1])}, s{sT2}, {vr(v16)}")
    a(f"s_lshl_b32 s{sT0}, s{sQB}, 3")
    a(f"s_add_u32 s{sT0}, s{sT0}, s{sT1}")
    a(f"s_lshl_b32 s{sT0}, s{sT0}, 5")
    a(f"s_add_u32 s{sT0}, s{sT0}, s{sHEAD}")
    a(f"s_mul_i32 s{sOB}, s{sT0}, 1280")
    a(f"s_add_u32 s{sOB}, s{sOB}, {OF}")
    a(f"s_cmp_eq_u32 s{sKH}, 0")
    a(f"s_cbranch_scc1 {name}_noswap")
    for i in range(12): a(f"v_swap_b32 {vr(O[0]+i)}, {vr(O[1]+i)}")
    for i in range(4): a(f"v_mov_b32 {vr(Qa[0]+i)}, {vr(Qa[1]+i)}")
    a(f"v_mov_b32 {vr(Qb[0])}, {vr(Qb[1])}")
    a.label(f"{name}_noswap")
    for i in range(3): a(f"ds_write_b128 {vr(T[0])}, {vr(O[1]+4*i,4)} offset:{1024*i}")
    a("s_waitcnt lgkmcnt(0)")
    a("s_barrier")
    a("; @m a_b6")
    for i in range(3): a(f"ds_read_b128 {vr(O[1]+4*i,4)}, {vr(T[1])} offset:{1024*i}")
    a(f"v_lshlrev_b32 {vr(T[2])}, 3, {vr(vL)}")
    a(f"v_cmp_gt_u32 vcc, 32, {vr(vL)}")
    a(f"v_mov_b32 {vr(T[3])}, {OOB}")
    a("s_nop 0")
    a(f"v_cndmask_b32 {vr(T[2])}, {vr(T[3])}, {vr(T[2])}, vcc")
    a("s_waitcnt lgkmcnt(0)")
    for i in range(0, 12, 2):
        a(f"v_pk_add_f32 {vr(O[0]+i,2)}, {vr(O[0]+i,2)}, {vr(O[1]+i,2)}")
    def finish(check):
        l0, l1 = T[3], T[4]
        a(f"v_mov_b32 {vr(l0)}, {vr(O[0]+8)}")
        a(f"v_mov_b32 {vr(l1)}, {vr(O[0]+8)}")
        a("s_nop 1")
        a(f"v_permlane32_swap_b32 {vr(l0)}, {vr(l1)}")
        a(f"v_rcp_f32 {vr(l0)}, {vr(l1)}")
        if check:
            a(f"v_max3_f32 {vr(T[5])}, abs({vr(O[0])}), abs({vr(O[0]+1)}), abs({vr(l1)})")
            for i in range(2, 12, 2):
                a(f"v_max3_f32 {vr(T[5])}, abs({vr(O[0]+i)}), abs({vr(O[0]+i+1)}), {vr(T[5])}")
            a(f"v_add_f32 {vr(T[0])}, {vr(O[0])}, {vr(O[0]+1)}")
            for i in range(2, 12):
                a(f"v_add_f32 {vr(T[0])}, {vr(T[0])}, {vr(O[0]+i)}")
            a(f"v_mov_b32 {vr(T[1])}, {f2u(2.0**100):#x}")
            a(f"v_cmp_nlt_f32 {sr(sM0,2)}, {vr(T[5])}, {vr(T[1])}")
            a(f"v_cmp_u_f32 {sr(sM1,2)}, {vr(T[0])}, {vr(T[0])}")
            a("s_nop 1")
            a(f"s_or_b64 {sr(sM0,2)}, {sr(sM0,2)}, {sr(sM1,2)}")
            a(f"s_cbranch_scc1 {name}_slow")
        else:
            a("s_nop 0")
        if tail:
            a("s_waitcnt vmcnt(0)")
            a(f"v_mul_f32 {vr(l0)}, {vr(l0)}, {vr(vG)}")
        for i in range(12):
            a(f"v_mul_f32 {vr(O[0]+i)}, {vr(O[0]+i)}, {vr(l0)}")
        for i in range(6):
            a(f"v_cvt_pk_bf16_f32 {vr(P[0]+i)}, {vr(O[0]+2*i)}, {vr(O[0]+2*i+1)}")
        a(f"buffer_store_dwordx4 {vr(P[0],4)}, {vr(v16)}, {sr(dWS,4)}, s{sOB} offen{st}")
        a(f"buffer_store_dwordx2 {vr(P[0]+4,2)}, {vr(T[2])}, {sr(dWS,4)}, s{sOB} offen offset:1024{st}")
        if not tail: a("s_endpgm")
        elif not check: a(f"s_branch {name}_tail")
    finish(True)
    if tail: out_proj(a, name, vL, T, v16, WE, Qa[0])

    a.label(f"{name}_slow")
    a(f"v_mov_b32 {vr(Qb[0]+1)}, 0")
    a(f"v_mov_b32 {vr(T[1])}, 0xff800000")
    a(f"s_mov_b32 s{sI}, s{sKB}")
    a(f"s_add_u32 s{sT3}, s{sKB}, 81920")
    a.label(f"{name}_slow1")
    a(f"buffer_load_dwordx4 {vr(Ka[0],4)}, {vr(v16)}, {sr(dWS,4)}, s{sI} offen")
    a(f"buffer_load_dword {vr(Kb[0])}, {vr(vB8)}, {sr(dWS,4)}, s{sI} offen offset:1024")
    a("s_waitcnt vmcnt(0)")
    for m in qk(0, 0): a(m)
    a.nop(12)
    max16(Sx[0], T[1], T[1])
    a(f"s_add_u32 s{sI}, s{sI}, 1280")
    a(f"s_cmp_lt_u32 s{sI}, s{sT3}")
    a(f"s_cbranch_scc1 {name}_slow1")
    set_shift(T[1], 0)
    for i in range(16): a(f"v_mov_b32 {vr(O[0]+i)}, 0")
    a(f"s_mov_b32 s{sI}, s{sKB}")
    a(f"s_mov_b32 s{sT0}, s{sVB}")
    a.label(f"{name}_slow2")
    a(f"buffer_load_dwordx4 {vr(Ka[0],4)}, {vr(v16)}, {sr(dWS,4)}, s{sI} offen")
    a(f"buffer_load_dword {vr(Kb[0])}, {vr(vB8)}, {sr(dWS,4)}, s{sI} offen offset:1024")
    a(f"s_mov_b64 exec, {sr(sEX,2)}")
    a(f"buffer_load_dwordx4 {vr(Vf[0],4)}, {vr(vVo)}, {sr(dWS,4)}, s{sT0} offen")
    a(f"buffer_load_dwordx4 {vr(Vf[0]+4,4)}, {vr(vVo)}, {sr(dWS,4)}, s{sT0} offen offset:640")
    a("s_mov_b64 exec, -1")
    a("s_waitcnt vmcnt(0)")
    for m in qk(0, 0): a(m)
    a.nop(12)
    for v in valu(0): a(v)
    a.nop(2)
    for m in pv(0, 0, False): a(m)
    a(f"s_add_u32 s{sI}, s{sI}, 1280")
    a(f"s_add_u32 s{sT0}, s{sT0}, 1280")
    a(f"s_cmp_lt_u32 s{sI}, s{sT3}")
    a(f"s_cbranch_scc1 {name}_slow2")
    a.nop(12)
    finish(False)

def out_proj(a, name, vL, T, v16, WE, free):
    rg = Regs(free, WE)
    ACC = rg.alloc('acc', 16, 2)
    OR = [rg.alloc(f'o{i}', 4, 2) for i in range(4)]
    WR = [rg.alloc(f'w{i}', 4, 2) for i in range(3)]
    NR = 40 - NE - NL
    WL = rg.alloc('wl', 4*NR, 2)
    aO, aR, aR2, aW1, aW2, aW3, aOut = range(v16 + 1, v16 + 8)
    a.label(f"{name}_tail")
    a.vm = []; a.lg = []
    a(f"v_mov_b32 {vr(T[0])}, 0")
    a(f"v_mov_b32 {vr(T[1])}, 1")
    a("; @m t_st")
    a("s_waitcnt vmcnt(0)")
    a("s_mov_b64 exec, 1")
    a(f"buffer_store_dword {vr(T[1])}, {vr(T[0])}, {sr(dWS,4)}, s{sFO} offen sc1")
    a("s_mov_b64 exec, -1")
    a("; @m t_flag")
    a(f"s_cmp_lt_u32 s{sWAVE}, 5")
    a(f"s_cbranch_scc1 {name}_owner")
    a("s_barrier")
    a("s_endpgm")
    a.label(f"{name}_owner")
    a.vm = ['flag']
    for k in range(NR):
        ks = NE + NL + k
        if k == 0 or ks % 4 == 0: a(f"s_add_u32 s{sT0}, s{sWB}, {4096*(ks // 4)}")
        a.vmem(f"buffer_load_dwordx4 {vr(WL+4*k,4)}, {vr(v16)}, {sr(dWS,4)}, s{sT0} offen offset:{1024*(ks % 4)}", ('w', ks))
    a(f"v_add_u32 {vr(aO)}, {OHI}, {vr(v16)}")
    a(f"v_and_b32 {vr(T[2])}, 31, {vr(vL)}")
    a(f"v_lshrrev_b32 {vr(T[4])}, 5, {vr(vL)}")
    a(f"v_mul_u32_u24 {vr(aR)}, 1280, {vr(T[4])}")
    a(f"v_lshl_add_u32 {vr(aR)}, {vr(T[2])}, 3, {vr(aR)}")
    a(f"v_add_u32 {vr(aR2)}, {OHI}, {vr(aR)}")
    a(f"s_lshl_b32 s{sT0}, s{sWAVE}, 10")
    a(f"v_add_u32 {vr(aW1)}, s{sT0}, {vr(v16)}")
    a(f"v_add_u32 {vr(aW2)}, 65536, {vr(aW1)}")
    a(f"v_add_u32 {vr(aW3)}, 131072, {vr(aW1)}")
    a(f"v_mul_u32_u24 {vr(aOut)}, 1280, {vr(T[2])}")
    a(f"v_lshl_add_u32 {vr(aOut)}, {vr(T[4])}, 4, {vr(aOut)}")
    a(f"s_mul_i32 s{sT1}, s{sCG}, 5")
    a(f"s_add_u32 s{sT1}, s{sT1}, s{sWAVE}")
    a(f"s_lshl_b32 s{sT1}, s{sT1}, 6")
    a(f"s_mul_i32 s{sT2}, s{sTB}, {32*1280}")
    a(f"s_add_u32 s{sT1}, s{sT1}, s{sT2}")
    srd(a, dO, sOUT, S*D*2)
    def lread(dst, addr, tag):
        a.lds(f"ds_read_b128 {vr(dst,4)}, {vr((aW1, aW2, aW3)[addr >> 16])} offset:{addr & 65535}", tag)
    def oread(k):
        f = OR[k % 4]
        if k < 32:
            a.lds(f"ds_read_b128 {vr(f,4)}, {vr(v16 if k < 16 else aO)} offset:{(k % 16)*1280}", k)
        else:
            g = k - 32
            for i in range(2):
                a.lds(f"ds_read_b64 {vr(f+2*i,2)}, {vr(aR if g < 4 else aR2)} offset:{(4*(g % 4) + 2*i)*1280 + 1024}", k)
        if NE <= k < NE + NL: lread(WR[k % 3], WBLK[k - NE], k)
    a("s_barrier")
    a("; @m t_b7")
    for q in range(4): lread(ACC + 4*q, blk(3*q), 0)
    for k in range(2): oread(k)
    for k in range(40):
        a.wait(vm=('w', k), lg=k)
        w = WE + 4*k if k < NE else (WR[k % 3] if k < NE + NL else WL + 4*(k - NE - NL))
        a(f"v_mfma_f32_32x32x16_bf16 {vr(ACC,16)}, {vr(w,4)}, {vr(OR[k % 4],4)}, {vr(ACC,16)}")
        if k + 2 < 40: oread(k + 2)
    a("; @m t_chain")
    a.nop(12)
    for i in range(8):
        a(f"v_cvt_pk_bf16_f32 {vr(OR[0]+i)}, {vr(ACC+2*i)}, {vr(ACC+2*i+1)}")
    a("s_nop 1")
    for p in range(2):
        a(f"v_permlane32_swap_b32 {vr(OR[0]+4*p)}, {vr(OR[0]+4*p+2)}")
        a(f"v_permlane32_swap_b32 {vr(OR[0]+4*p+1)}, {vr(OR[0]+4*p+3)}")
    for p in range(2):
        a(f"buffer_store_dwordx4 {vr(OR[0]+4*p,4)}, {vr(aOut)}, {sr(dO,4)}, s{sT1} offen offset:{32*p}")
    a("s_endpgm")

def red_addr(a, dst, beta):
    a(f"s_cmp_ge_u32 s{beta}, 8")
    a(f"s_cselect_b32 s{dst}, {RED2 - RED1 - 40960}, 0")
    a(f"s_mulk_i32 s{beta}, 5120")
    a(f"s_add_u32 s{dst}, s{dst}, s{beta}")
    a(f"s_add_u32 s{dst}, s{dst}, {RED1}")

def aux(a, name, vL, T, base, st, fused):
    helper = OPT['helper']
    tail = fused and OPT['tail']
    a.vm = []; a.lg = []
    rg = Regs(base, 168)
    v16 = rg.alloc('v16'); aH = rg.alloc('aH'); aWd = rg.alloc('aWd', 5); vG = rg.alloc('vG')
    FR = [rg.alloc(f'fr{i}', 24, 2) for i in range(3)]
    ACC = rg.alloc('acc', 80, 2)
    decode(a)
    a(f"s_sub_u32 s{sHW}, s{sWAVE}, 8")
    a(f"v_lshlrev_b32 {vr(v16)}, 4, {vr(vL)}")
    def dma(src, srcoff, lds_s, ldsoff, n, tag):
        j = 0
        while j < n:
            if lds_s is None: a(f"s_mov_b32 m0, {ldsoff + 1024*j}")
            else: a(f"s_add_u32 m0, s{lds_s}, {ldsoff + 1024*j}")
            a(f"s_add_u32 s{sT0}, s{src}, {srcoff + 1024*j}")
            for i in range(min(4, n - j)):
                a.vmem(f"buffer_load_dwordx4 {vr(v16)}, {sr(dWS,4)}, s{sT0} offen offset:{1024*i} lds", tag)
            j += 4
    a(f"s_cmp_lg_u32 s{sHW}, 0")
    a(f"s_cbranch_scc1 {name}_first_done")
    if fused:
        a("; @m x_p1")
        a(f"s_lshr_b32 s{sT1}, s{sHEAD}, 4")
        a(f"s_lshl_b32 s{sT1}, s{sT1}, 7")
        a(f"s_lshl_b32 s{sT2}, s{sXCD}, 10")
        a(f"s_add_u32 s{sT1}, s{sT1}, s{sT2}")
        a(f"s_add_u32 s{sT1}, s{sT1}, {FQ}")
        a(f"v_and_b32 {vr(T[0])}, 15, {vr(vL)}")
        a(f"v_lshlrev_b32 {vr(T[0])}, 2, {vr(T[0])}")
        a(f"v_bfe_u32 {vr(T[1])}, {vr(vL)}, 4, 1")
        a(f"v_lshlrev_b32 {vr(T[1])}, 8, {vr(T[1])}")
        a(f"v_add3_u32 {vr(T[0])}, {vr(T[0])}, {vr(T[1])}, 0")
        a(f"v_add_u32 {vr(T[0])}, 256, {vr(T[0])}")
        a(f"v_and_b32 {vr(T[1])}, 1, {vr(vL)}")
        a(f"s_lshl_b32 s{sT2}, s{sQB}, 1")
        a(f"v_add_lshl_u32 {vr(T[1])}, {vr(T[1])}, s{sT2}, 2")
        a(f"v_cmp_gt_u32 vcc, 32, {vr(vL)}")
        a("s_nop 1")
        a(f"v_cndmask_b32 {vr(T[0])}, {vr(T[1])}, {vr(T[0])}, vcc")
        poll(a, f"{name}_poll1", T[0], T[1], 1, dWS, f"s{sT1}")
        a("; @m x_kv")
    a(f"s_mul_i32 s{sT1}, s{sQB}, 10240")
    a(f"s_add_u32 s{sT1}, s{sT1}, s{sKB}")
    dma(sT1, 0, None, QS, 10, 'c0')
    dma(sKB, KF, None, KS[0], 20, 'c0')
    dma(sVB, 0, None, VS[0], 20, 'c0')
    a.wait(vm='all')
    a.label(f"{name}_first_done")
    a(f"s_mul_i32 s{sL5}, s{sHW}, 5120")
    a(f"s_add_u32 s{sKB}, s{sKB}, s{sL5}")
    a(f"s_add_u32 s{sVB}, s{sVB}, s{sL5}")
    def chunk(c):
        dma(sKB, KF + c*20480, sL5, KS[c], 5, ('c', c))
        dma(sVB, c*20480, sL5, VS[c], 5, ('c', c))
    out_tile(a)
    a(f"s_mul_i32 s{sT0}, s{sTB}, {108*1024}")
    a(f"s_add_u32 s{sT0}, s{sT0}, {HF}")
    a(f"v_add_u32 {vr(aH)}, s{sT0}, {vr(v16)}")
    a(f"s_mul_i32 s{sT0}, s{sCG}, {5*110592}")
    a(f"s_add_u32 s{sT0}, s{sT0}, {WDF}")
    for i in range(5):
        a(f"v_add_u32 {vr(aWd+i)}, s{sT0}, {vr(v16)}")
        if i < 4: a(f"s_add_u32 s{sT0}, s{sT0}, 110592")
    a(f"s_mul_i32 s{sKO}, s{sHW}, {27*1024}")
    def dload(k):
        f = FR[k % 3]
        if k and k % 4 == 0: a(f"s_add_u32 s{sKO}, s{sKO}, 4096")
        o = 1024*(k % 4)
        a.vmem(f"buffer_load_dwordx4 {vr(f,4)}, {vr(aH)}, {sr(dWS,4)}, s{sKO} offen offset:{o}", ('d', k))
        for i in range(5):
            a.vmem(f"buffer_load_dwordx4 {vr(f+4+4*i,4)}, {vr(aWd+i)}, {sr(dWS,4)}, s{sKO} offen offset:{o}", ('d', k))
    def dstep(k):
        a.wait(vm=('d', k))
        f = FR[k % 3]
        for i in range(5):
            a(f"v_mfma_f32_32x32x16_bf16 {vr(ACC+16*i,16)}, {vr(f+4+4*i,4)}, {vr(f,4)}, {'0' if k == 0 else vr(ACC+16*i,16)}")
        if k + 3 < 27: dload(k + 3)
    a("; @m x_c0")
    a("s_barrier")
    chunk(1); chunk(2)
    a.wait(vm='all')
    a("s_barrier")
    if fused:
        a(f"v_and_b32 {vr(T[0])}, 15, {vr(vL)}")
        a(f"v_min_u32 {vr(T[1])}, 8, {vr(T[0])}")
        a(f"s_lshr_b32 s{sT1}, s{sTB}, 2")
        a(f"s_lshl_b32 s{sT1}, s{sT1}, 7")
        a(f"s_add_u32 s{sT1}, s{sT1}, {FH}")
        a(f"v_lshl_add_u32 {vr(T[1])}, {vr(T[1])}, 2, s{sT1}")
        a(f"v_lshlrev_b32 {vr(T[0])}, 2, {vr(T[0])}")
        a(f"v_cmp_gt_u32 vcc, 16, {vr(vL)}")
        a(f"v_add_u32 {vr(T[0])}, {FM}, {vr(T[0])}")
        a("s_nop 0")
        a(f"v_cndmask_b32 {vr(T[0])}, {vr(T[0])}, {vr(T[1])}, vcc")
        poll(a, f"{name}_poll2", T[0], T[1], 1)
    a("; @m x_h")
    if tail:
        a(f"v_and_b32 {vr(T[0])}, 31, {vr(vL)}")
        a(f"v_lshlrev_b32 {vr(T[0])}, 2, {vr(T[0])}")
        a(f"s_lshl_b32 s{sT0}, s{sTB}, 7")
        a(f"s_add_u32 s{sT0}, s{sT0}, {GG}")
        a.vmem(f"buffer_load_dword {vr(vG)}, {vr(T[0])}, {sr(dWS,4)}, s{sT0} offen", ('g', 0))
    def wblock(lds_s, ks_s):
        a(f"s_lshl_b32 s{ks_s}, s{ks_s}, 10")
        a(f"s_add_u32 s{ks_s}, s{ks_s}, s{sWB}")
        for t in range(5):
            if t == 0: a(f"s_mov_b32 m0, s{lds_s}")
            if t == 4: a(f"s_add_u32 m0, s{lds_s}, 4096")
            if t: a(f"s_add_u32 s{ks_s}, s{ks_s}, {40960 - 1024 if t < 4 else 40960 + 3072}")
            else: a("s_nop 0")
            a.vmem(f"buffer_load_dwordx4 {vr(v16)}, {sr(dWS,4)}, s{ks_s} offen offset:{1024*(t % 4)} lds", ('wo', 0))
    cuts = OPT.get('dcuts', (14, 23, 27))
    if helper:
        dload(0); dload(1); dload(2)
        for k in range(0, cuts[0]): dstep(k)
    a("s_barrier")
    chunk(3)
    if helper:
        for k in range(cuts[0], cuts[1]): dstep(k)
    a.wait(vm=lambda t: t[0] == 'c')
    a("s_barrier")
    if helper:
        for k in range(cuts[1], 27): dstep(k)
    a.nop(10)
    a("; @m x_down")
    a("s_barrier")
    if tail:
        a(f"s_cmp_eq_u32 s{sHW}, 3")
        a(f"s_cbranch_scc1 {name}_nowb")
        for half in range(2):
            a(f"s_mov_b32 s{sT1}, {WBLK[3*half]}")
            for w in (1, 2):
                a(f"s_cmp_eq_u32 s{sHW}, {w}")
                a(f"s_cselect_b32 s{sT1}, {WBLK[3*half + w]}, s{sT1}")
            a(f"s_add_u32 s{sT2}, s{sHW}, {NE + 3*half}")
            wblock(sT1, sT2)
        a.label(f"{name}_nowb")
    if helper:
        for own in range(4):
            a(f"s_cmp_eq_u32 s{sHW}, {own}")
            a(f"s_cbranch_scc1 {name}_skip{own}")
            a(f"s_sub_u32 s{sT0}, s{sHW}, {own + 1}")
            a(f"s_and_b32 s{sT0}, s{sT0}, 3")
            a(f"s_add_u32 s{sT0}, s{sT0}, {own*3}")
            red_addr(a, sT1, sT0)
            a(f"v_add_u32 {vr(T[0])}, s{sT1}, {vr(v16)}")
            for t in range(5):
                a(f"ds_write_b128 {vr(T[0])}, {vr(ACC+16*t+4*own,4)} offset:{1024*t}")
            a(f"s_branch {name}_next{own}")
            a.label(f"{name}_skip{own}")
            for t in range(5):
                for i in range(4):
                    a(f"v_mov_b32 {vr(FR[0]+4*t+i)}, {vr(ACC+16*t+4*own+i)}")
            a.label(f"{name}_next{own}")
        a("s_waitcnt lgkmcnt(0)")
    a("s_barrier")
    if helper:
        for snd in range(3):
            a(f"s_mul_i32 s{sT0}, s{sHW}, 3")
            a(f"s_add_u32 s{sT0}, s{sT0}, {snd}")
            red_addr(a, sT1, sT0)
            a(f"v_add_u32 {vr(T[snd])}, s{sT1}, {vr(v16)}")
            for t in range(5):
                a(f"ds_read_b128 {vr(ACC+20*snd+4*t,4)}, {vr(T[snd])} offset:{1024*t}")
        if tail:
            a(f"v_sub_f32 {vr(vG)}, 1.0, {vr(vG)}")
            a("s_waitcnt lgkmcnt(0)")
            for i in (1, 2):
                a(f"s_mul_i32 s{sT0}, s{sHW}, 3")
                a(f"s_add_u32 s{sT0}, s{sT0}, {i}")
                red_addr(a, sT1, sT0)
                a(f"s_lshl_b32 s{sT2}, s{sHW}, 1")
                a(f"s_add_u32 s{sT2}, s{sT2}, {NE + 6 + i - 1}")
                wblock(sT1, sT2)
            for snd in range(3):
                for i in range(0, 20, 2):
                    a(f"v_pk_add_f32 {vr(FR[0]+i,2)}, {vr(FR[0]+i,2)}, {vr(ACC+20*snd+i,2)}")
            for i in range(20):
                a(f"v_mul_f32 {vr(FR[0]+i)}, {vr(FR[0]+i)}, {vr(vG)}")
            for t in range(5):
                a(f"ds_write_b128 {vr(T[0])}, {vr(FR[0]+4*t,4)} offset:{1024*t}")
            a("s_waitcnt lgkmcnt(0)")
        else:
            a(f"s_lshl_b32 s{sT0}, s{sTB}, 2")
            a(f"s_add_u32 s{sT0}, s{sT0}, s{sCG}")
            a(f"s_mul_i32 s{sT0}, s{sT0}, 10240")
            a(f"s_lshl_b32 s{sT1}, s{sHW}, 9")
            a(f"s_add_u32 s{sT0}, s{sT0}, s{sT1}")
            a(f"s_add_u32 s{sT0}, s{sT0}, {BF}")
            a(f"v_lshlrev_b32 {vr(T[3])}, 3, {vr(vL)}")
            a("s_waitcnt lgkmcnt(0)")
            for snd in range(3):
                for i in range(0, 20, 2):
                    a(f"v_pk_add_f32 {vr(FR[0]+i,2)}, {vr(FR[0]+i,2)}, {vr(ACC+20*snd+i,2)}")
            for t in range(5):
                a(f"v_cvt_pk_bf16_f32 {vr(FR[1]+2*t)}, {vr(FR[0]+4*t)}, {vr(FR[0]+4*t+1)}")
                a(f"v_cvt_pk_bf16_f32 {vr(FR[1]+2*t+1)}, {vr(FR[0]+4*t+2)}, {vr(FR[0]+4*t+3)}")
                if t == 2: a(f"s_add_u32 s{sT0}, s{sT0}, 4096")
                if t == 4: a(f"s_add_u32 s{sT0}, s{sT0}, 4096")
                a(f"buffer_store_dwordx2 {vr(FR[1]+2*t,2)}, {vr(T[3])}, {sr(dWS,4)}, s{sT0} offen offset:{2048*(t & 1)}{st}")
    a("s_barrier")
    if tail:
        a(f"v_and_b32 {vr(T[0])}, 7, {vr(vL)}")
        a(f"v_lshlrev_b32 {vr(T[0])}, 2, {vr(T[0])}")
        a(f"s_lshl_b32 s{sT1}, s{sTB}, 7")
        a(f"s_lshl_b32 s{sT2}, s{sHW}, 5")
        a(f"s_add_u32 s{sT1}, s{sT1}, s{sT2}")
        a(f"s_add_u32 s{sT1}, s{sT1}, {FO}")
        a("; @m x_b6")
        poll(a, f"{name}_poll3", T[0], T[1], 1, dWS, f"s{sT1}")
        a("; @m x_o")
        a(f"s_mul_i32 s{sT1}, s{sTB}, 40960")
        a(f"s_mul_i32 s{sT2}, s{sHW}, 10240")
        a(f"s_add_u32 s{sT1}, s{sT1}, s{sT2}")
        a(f"s_cmp_ge_u32 s{sHW}, 2")
        a(f"s_cselect_b32 s{sT3}, {OHI - 20480}, 0")
        a(f"s_add_u32 s{sT2}, s{sT2}, s{sT3}")
        dma(sT1, OF, sT2, 0, 10, 'o')
        a.wait(vm='all')
        a("s_barrier")
    a("s_endpgm")
```

```python
import sys
import build, p1, p2, fused, k3
def parts(st1="", st2="", st3="", **kw):
    return [("proj_kernel", 256, 768, p1.emit_k1("proj_kernel", st1)),
            ("attn_kernel", 256, 768, fused.emit_k2("attn_kernel", st2)),
            ("outp_kernel", 256, 320, k3.emit_k3("outp_kernel", st3))]
def parts2(st1=" sc1", st2=" sc1", st3=""):
    p2.OPT['tail'] = False
    r = [("main_kernel", 256, 768, fused.emit_k12("main_kernel", st1, st2)),
            ("outp_kernel", 256, 320, k3.emit_k3("outp_kernel", st3))]
    p2.OPT['tail'] = True
    return r
def parts1(st1=" sc1", st2=" sc1", name="main_kernel"):
    return [(name, 256, 768, fused.emit_k12(name, st1, st2))]
if __name__ == "__main__":
    build.build(parts1(name=build.MAIN), "gated_mix__softmax_full_mha__glu_gated_glu__prompt.s")
```

```python
from asmlib import *
from common import *
import p1, p2
from p1 import sSLOT, sWAVE, sWS, dWS

OPT = dict(codepf=True)
def emit_k2(name, st=""):
    a = Asm()
    a.raw(f".globl {name}\n.p2align 8\n.type {name},@function\n{name}:")
    vL = 1; T = list(range(2, 8)); base = 8
    p1.entry(a, name, vL, T[0])
    a("s_waitcnt lgkmcnt(0)")
    srd(a, dWS, sWS, WS_SIZE)
    a(f"s_cmp_ge_u32 s{sWAVE}, 8")
    a(f"s_cbranch_scc1 {name}_aux")
    p2.attention(a, name, vL, T, base, st, False)
    a.label(f"{name}_aux")
    p2.aux(a, name, vL, T, base, st, False)
    a.label(f"{name}_end")
    a("s_endpgm")
    return a.text(), kd(name, 168, 102), p2.LDS

def emit_k12(name, st1=" sc1", st2=""):
    a = Asm()
    a.raw(f".globl {name}\n.p2align 8\n.type {name},@function\n{name}:")
    vL = 1; T = list(range(2, 8)); base = 8
    p1.entry(a, name, vL, T[0], dbg=p2.sDBG)
    a(f"s_cmp_ge_u32 s{sSLOT}, 30")
    a(f"s_cbranch_scc1 {name}_pre")
    a(f"s_cmp_lt_u32 s{sWAVE}, 8")
    a(f"s_cbranch_scc1 {name}_pre")
    p1.loader(a, name, vL, T, base, lambda: a(f"s_branch {name}_aux"), lambda gu: p2.wait_cleared(a, f"{name}_clr{gu}", T, 8))
    a.label(f"{name}_pre")
    if OPT['codepf']:
        a(f"s_cmp_lg_u32 s{sWAVE}, 7")
        a(f"s_cbranch_scc1 {name}_nocp")
        a(f"s_getpc_b64 s[{p1.dG}:{p1.dG+1}]")
        a.label(f"{name}_pc")
        a(f"s_sub_u32 s{p1.dG}, s{p1.dG}, {name}_pc-{name}")
        a(f"s_subb_u32 s{p1.dG+1}, s{p1.dG+1}, 0")
        a(f"s_mov_b32 s{p1.dG+2}, {name}_end-{name}")
        a(f"s_mov_b32 s{p1.dG+3}, 0x00020000")
        a(f"s_lshl_b32 s{p1.sT0}, s{sSLOT}, 13")
        a(f"v_lshlrev_b32 {vr(T[5])}, 7, {vr(vL)}")
        a(f"buffer_load_dword v167, {vr(T[5])}, {sr(p1.dG,4)}, s{p1.sT0} offen")
        a.label(f"{name}_nocp")
    p2.reset_flags(a, name, vL, T)
    a(f"s_cmp_ge_u32 s{sSLOT}, 30")
    a(f"s_cbranch_scc1 {name}_misc")
    def done(kind):
        if kind != 'gu':
            p2.publish(a, f"{name}_pub{kind}", vL, T, 8, st1, True)
        a(f"s_branch {name}_att")
    hook = lambda k, n: p2.count_in(a, f"{name}_cnt{k}", T, n)
    p1.compute(a, name, vL, T, base, st1, done, hook)
    a.label(f"{name}_misc")
    a("s_barrier")
    def mdone():
        p2.wait_cleared(a, f"{name}_clrm", T, 0)
        a("s_barrier")
        p2.publish(a, f"{name}_pubm", vL, T, 12, st1, True)
        a("s_barrier")
        a(f"s_cmp_ge_u32 s{sWAVE}, 8")
        a(f"s_cbranch_scc1 {name}_aux")
    p1.misc(a, name, vL, T, base, st1, mdone)
    a.label(f"{name}_att")
    p2.attention(a, name, vL, T, base, st2, True)
    a.label(f"{name}_aux")
    p2.aux(a, name, vL, T, base, st2, True)
    a.label(f"{name}_end")
    a("s_endpgm")
    return a.text(), kd(name, 168, 102), p2.LDS
```

```python
from asmlib import *
from common import *

WRING = 0
XRING = 98304
XPOS = [0, 2, 1]
NSTEP = 20
LASTB = 17
OPT = dict(prefetch=True, stagger=True, pf_lead=5, touch=-1, touch_h=False, hold_h=True, pf_after=True, first=3)

sXP, sWQ, sWO, sBX, sWG, sWU, sWD, sGW = 4, 6, 8, 10, 12, 14, 16, 18
sWS, sOUT = 20, 22
dX, dW, dWS = 24, 28, 32
sXCD, sSLOT, sWAVE, sCOL, sRB, sT0, sT1, sT2, sT3 = 36, 37, 38, 39, 40, 41, 42, 43, 44
sXW, sWW, sWK = 45, 46, 47
sC0, sC1 = 48, 50
sWM, sWN = 52, 53
sHW = 54
sPS = 55
dG = 56
sH0, sH1 = 60, 61
HOLD = [(156, 1, 2), (160, 0, 2), (164, 1, 1), (140, 0, 1), (144, 1, 0), (148, 0, 0)]
def xslot(b): return XRING + 16384*XPOS[b % 3]

def entry(a, name, vL, vT, dbg=None):
    a("s_cmp_ge_u32 s2, 256")
    a(f"s_cbranch_scc1 {name}_end")
    a(f"s_load_dwordx16 s[4:19], s[0:1], 0")
    a(f"s_load_dwordx2 s[{sWS}:{sWS+1}], s[0:1], 80")
    a(f"s_load_dwordx2 s[{sOUT}:{sOUT+1}], s[0:1], 64")
    if dbg: a(f"s_load_dwordx2 s[{dbg}:{dbg+1}], s[0:1], 72")
    a(f"v_lshrrev_b32 {vr(vT)}, 6, v0")
    a(f"v_and_b32 {vr(vL)}, 63, v0")
    a(f"v_readfirstlane_b32 s{sWAVE}, {vr(vT)}")
    a(f"s_and_b32 s{sXCD}, s2, 7")
    a(f"s_lshr_b32 s{sSLOT}, s2, 3")
    a(f"s_and_b32 s{sT1}, s{sXCD}, 1")
    a(f"s_lshr_b32 s{sT0}, s{sSLOT}, 2")
    a(f"s_lshl_b32 s{sT0}, s{sT0}, 1")
    a(f"s_add_u32 s{sCOL}, s{sT0}, s{sT1}")
    a(f"s_mul_i32 s{sT1}, s{sT1}, 18")
    a(f"s_add_u32 s{sT1}, s{sT1}, s{sSLOT}")
    a(f"s_add_u32 s{sT1}, s{sT1}, 12")
    a(f"s_lshr_b32 s{sT0}, s{sT1}, 2")
    a(f"s_cmp_lt_u32 s{sSLOT}, 12")
    a(f"s_cselect_b32 s{sCOL}, s{sCOL}, s{sT0}")
    a(f"s_cselect_b32 s{sT0}, s{sSLOT}, s{sT1}")
    a(f"s_and_b32 s{sT0}, s{sT0}, 3")
    a(f"s_lshr_b32 s{sRB}, s{sXCD}, 1")
    a(f"s_lshl_b32 s{sRB}, s{sRB}, 2")
    a(f"s_add_u32 s{sRB}, s{sRB}, s{sT0}")

def loader(a, name, vL, T, base, done, hook=None):
    vWo, vXo = base, base + 1
    sWS_ = sC1
    a(f"s_sub_u32 s{sHW}, s{sWAVE}, 8")
    a(f"v_lshrrev_b32 {vr(T[0])}, 3, {vr(vL)}")
    a(f"v_lshrrev_b32 {vr(T[1])}, 4, {vr(vL)}")
    a(f"v_and_b32 {vr(T[2])}, 7, {vr(vL)}")
    a(f"s_lshl_b32 s{sT0}, s{sRB}, 2")
    a(f"s_add_u32 s{sT0}, s{sT0}, s{sHW}")
    a(f"s_mul_i32 s{sT0}, s{sT0}, {32*1280}")
    a(f"v_mul_u32_u24 {vr(T[3])}, 1280, {vr(T[0])}")
    a(f"v_xor_b32 {vr(T[4])}, {vr(T[1])}, {vr(T[2])}")
    a(f"v_add_u32 {vr(T[3])}, s{sT0}, {vr(T[3])}")
    a(f"v_lshl_add_u32 {vr(vXo)}, {vr(T[4])}, 4, {vr(T[3])}")
    a(f"v_xor_b32 {vr(vXo+1)}, 64, {vr(vXo)}")
    a(f"v_add_u32 {vr(vXo+1)}, {8*1280 - 1024}, {vr(vXo+1)}")
    a(f"s_lshl_b32 s{sXW}, s{sHW}, 12")
    a(f"v_and_b32 {vr(T[1])}, 1, {vr(T[1])}")
    a(f"s_mov_b32 s{sT3}, {16*1280}")
    a(f"s_cmp_ge_u32 s{sCOL}, 6")
    a(f"s_cbranch_scc1 {name}_ld_gu")
    for gu in (0, 1):
        pitchG = 3456 if gu else 3840
        if gu: a.label(f"{name}_ld_gu")
        a.vm = []
        def dma_w(s):
            pieces = [(g, rg_) for rg_ in range(2) for g in range(3)] if gu else [(g, 0) for g in range(5)]
            for g, rg_ in pieces:
                a(f"s_add_u32 m0, s{sWW}, {WRING + (s % 4)*24576 + g*4096 + rg_*1024}")
                a(f"s_add_u32 s{sWK}, s{sWS_}, {(s*32 + rg_*8)*pitchG + g*128}")
                a.vmem(f"buffer_load_dwordx4 {vr(vWo)}, {sr(dW,4)}, s{sWK} offen lds", ('w', s))
        def dma_x(b, h):
            a(f"s_add_u32 m0, s{sXW}, {xslot(b) + h*2048 - b*128}")
            a("s_nop 0")
            for j in range(2):
                a.vmem(f"buffer_load_dwordx4 {vr(vXo+j)}, {sr(dX,4)}, {f's{sT3}' if h else '0'} offen offset:{b*128 + 1024*j} lds", ('x', b))
        a("; @m l_pre")
        a("s_waitcnt lgkmcnt(0)")
        a("; @m l_arg")
        srd(a, dX, sXP, S*D*2)
        dma_x(0, 0); dma_x(0, 1)
        a(f"v_mul_u32_u24 {vr(T[0])}, {pitchG}, {vr(T[0])}")
        if gu:
            a(f"s_lshr_b32 s{sT2}, s{sHW}, 1")
            a(f"s_and_b32 s{sT1}, s{sHW}, 1")
            a(f"s_lshl_b32 s{sT0}, s{sT2}, 1")
            a(f"v_or_b32 {vr(T[1])}, s{sT0}, {vr(T[1])}")
            a(f"v_lshlrev_b32 {vr(T[1])}, 1, {vr(T[1])}")
            a(f"s_mul_i32 s{sWW}, s{sT2}, 12288")
            a(f"s_lshl_b32 s{sT0}, s{sT1}, 11")
            a(f"s_add_u32 s{sWW}, s{sWW}, s{sT0}")
            a(f"s_mul_i32 s{sWS_}, s{sT1}, {16*pitchG}")
            a(f"s_mul_i32 s{sT0}, s{sCOL}, 384")
            a(f"s_add_u32 s{sWS_}, s{sWS_}, s{sT0}")
            a(f"s_sub_u32 s{sWS_}, s{sWS_}, {6*384}")
            a(f"s_cmp_eq_u32 s{sT2}, 0")
            a(f"s_cselect_b32 s{dW}, s{sWG}, s{sWU}")
            a(f"s_cselect_b32 s{dW+1}, s{sWG+1}, s{sWU+1}")
            a(f"s_mov_b32 s{dW+2}, {D*F*2}")
            a(f"s_mov_b32 s{dW+3}, 0x00020000")
        else:
            a(f"v_lshlrev_b32 {vr(T[1])}, 2, {vr(T[1])}")
            a(f"s_lshl_b32 s{sWW}, s{sHW}, 10")
            a(f"s_mul_i32 s{sWS_}, s{sHW}, {8*pitchG}")
            a(f"s_mul_i32 s{sT0}, s{sCOL}, 640")
            a(f"s_add_u32 s{sWS_}, s{sWS_}, s{sT0}")
            srd(a, dW, sWQ, D*3*D*2)
        a(f"v_xor_b32 {vr(T[1])}, {vr(T[1])}, {vr(T[2])}")
        a(f"v_lshl_add_u32 {vr(vWo)}, {vr(T[1])}, 4, {vr(T[0])}")
        dma_w(0)
        a("; @m l_iss")
        rest = [lambda: dma_w(1), lambda: (dma_x(1, 0), dma_x(1, 1), dma_w(2))]
        for f in rest[:OPT['first'] - 1]: f()
        srd(a, dWS, sWS, WS_SIZE)
        for s in range(LASTB + 1):
            lim = s if s < LASTB else NSTEP
            a.wait(vm=lambda t: (t[0] == 'w' and t[1] <= lim) or (t[0] == 'x' and t[1] <= lim >> 1))
            if s == 0: a("; @m l_b0")
            a("s_barrier")
            if s == 0:
                for f in rest[OPT['first'] - 1:]: f()
            if s + 3 < NSTEP: dma_w(s + 3)
            bx = (s + 4) >> 1
            if bx < NSTEP // 2: dma_x(bx, s & 1)
            if hook and s == 12: hook(gu)
        done()

def compute(a, name, vL, T, base, st, done, hook=None):
    def ds_x_addr(aX, sh):
        a(f"v_and_b32 {vr(T[0])}, 31, {vr(vL)}")
        a(f"v_lshrrev_b32 {vr(T[1])}, 5, {vr(vL)}")
        a(f"v_bfe_u32 {vr(T[2])}, {vr(vL)}, 1, 3")
        a(f"v_xor_b32 {vr(T[1])}, {vr(T[1])}, {vr(T[2])}")
        a(f"s_lshl_b32 s{sT0}, s{sWM}, {sh + 7}")
        a(f"s_add_u32 s{sT0}, s{sT0}, {XRING}")
        a(f"v_lshl_add_u32 {vr(T[0])}, {vr(T[0])}, 7, s{sT0}")
        for e in range(4):
            a(f"v_xor_b32 {vr(T[2])}, {2*e}, {vr(T[1])}")
            a(f"v_lshl_add_u32 {vr(aX+e)}, {vr(T[2])}, 4, {vr(T[0])}")
    def dest_qkv(kind):
        assert VH == 81920 and KF - QF == VF - KF
        a(f"s_and_b32 s{sT0}, s{sCOL}, 1")
        a(f"s_lshl_b32 s{sT0}, s{sT0}, 1")
        a(f"s_add_u32 s{sT0}, s{sT0}, s{sWN}")
        a(f"s_mul_i32 s{sT0}, s{sT0}, {8*81920}")
        a(f"s_lshl_b32 s{sT1}, s{sRB}, 2")
        a(f"s_add_u32 s{sT1}, s{sT1}, s{sWM}")
        a(f"s_mul_i32 s{sT1}, s{sT1}, 1280")
        a(f"s_add_u32 s{sT0}, s{sT0}, s{sT1}")
        a(f"s_lshr_b32 s{sT1}, s{sCOL}, 1")
        a(f"s_mul_i32 s{sT1}, s{sT1}, {KF - QF}")
        a(f"s_add_u32 s{sT0}, s{sT0}, s{sT1}")
    def dest_gu():
        a(f"s_lshl_b32 s{sT0}, s{sRB}, 1")
        a(f"s_add_u32 s{sT0}, s{sT0}, s{sWM}")
        a(f"s_mul_i32 s{sT0}, s{sT0}, {2*108}")
        a(f"s_sub_u32 s{sT1}, s{sCOL}, 6")
        a(f"s_mul_i32 s{sT1}, s{sT1}, 12")
        a(f"s_add_u32 s{sT0}, s{sT0}, s{sT1}")
        a(f"s_mul_i32 s{sT1}, s{sWN}, 3")
        a(f"s_add_u32 s{sT0}, s{sT0}, s{sT1}")
        a(f"s_lshl_b32 s{sT0}, s{sT0}, 10")
        a(f"s_add_u32 s{sT0}, s{sT0}, {HF}")
        a(f"s_add_u32 s{sT1}, s{sT0}, {108*1024}")
    def pf_plan(gu):
        lead = OPT['pf_lead']
        if gu:  P = {1: ('g', 3), 2: ('u', 3), 3: ('g', 13), 4: ('u', 13), 5: ('x', 3)}
        else:   P = {1: ('q', 3), 2: ('q', 9), 3: ('q', 15), 5: ('x', 3)}
        return {w: (m, f, max(0, (2*f if m == 'x' else f) - lead)) for w, (m, f) in P.items()}
    def prefetch_setup(gu, vP):
        nl = 3 if gu else 5
        per = 2*nl
        nst = 64 // per
        pitch = 3456 if gu else 3840
        plan = pf_plan(gu)
        a(f"s_cmp_eq_u32 s{sWAVE}, 5")
        a(f"s_mov_b32 s{sT0}, {(65536 + per - 1)//per}")
        a(f"s_cselect_b32 s{sT0}, {(65536 + 8)//9}, s{sT0}")
        a(f"s_cselect_b32 s{sT1}, 9, {per}")
        a(f"v_mul_u32_u24 {vr(T[0])}, s{sT0}, {vr(vL)}")
        a(f"v_lshrrev_b32 {vr(T[0])}, 16, {vr(T[0])}")
        a(f"v_mul_u32_u24 {vr(T[1])}, s{sT1}, {vr(T[0])}")
        a(f"v_sub_u32 {vr(T[1])}, {vr(vL)}, {vr(T[1])}")
        a(f"s_cbranch_scc1 {name}_pfx{int(gu)}")
        a(f"v_cmp_le_u32 vcc, {nl}, {vr(T[1])}")
        a(f"v_mul_u32_u24 {vr(T[0])}, {32*pitch}, {vr(T[0])}")
        a(f"v_lshl_add_u32 {vr(T[0])}, {vr(T[1])}, 7, {vr(T[0])}")
        a(f"v_mov_b32 {vr(T[2])}, {pitch - 128*nl}")
        a(f"v_cndmask_b32 {vr(T[2])}, 0, {vr(T[2])}, vcc")
        a(f"v_add_u32 {vr(T[0])}, {vr(T[0])}, {vr(T[2])}")
        a(f"v_cmp_gt_u32 vcc, {nst*per}, {vr(vL)}")
        a(f"s_mul_i32 s{sT0}, s{sRB}, {2*pitch}")
        if gu:
            a(f"s_sub_u32 s{sT1}, s{sCOL}, 6")
            a(f"s_mul_i32 s{sT1}, s{sT1}, 384")
            a(f"s_add_u32 s{sT0}, s{sT0}, s{sT1}")
            a(f"s_cmp_ge_u32 s{sWAVE}, 3")
            a(f"s_cselect_b32 s{sT1}, {13*32*pitch}, {3*32*pitch}" if False else f"s_cselect_b32 s{sT1}, 13, 3")
        else:
            a(f"s_mul_i32 s{sT1}, s{sCOL}, 640")
            a(f"s_add_u32 s{sT0}, s{sT0}, s{sT1}")
            a(f"s_mul_i32 s{sT1}, s{sWAVE}, 6")
            a(f"s_sub_u32 s{sT1}, s{sT1}, 3")
        a(f"s_mul_i32 s{sT1}, s{sT1}, {32*pitch}")
        a(f"s_add_u32 s{sT0}, s{sT0}, s{sT1}")
        a(f"s_branch {name}_pfj{int(gu)}")
        a.label(f"{name}_pfx{int(gu)}")
        a(f"s_mul_i32 s{sT0}, s{sCOL}, 9")
        a(f"v_add_u32 {vr(T[1])}, s{sT0}, {vr(T[1])}")
        a(f"v_cmp_gt_u32 vcc, 128, {vr(T[1])}")
        a(f"v_mul_u32_u24 {vr(T[1])}, 1280, {vr(T[1])}")
        a(f"v_lshl_add_u32 {vr(T[0])}, {vr(T[0])}, 7, {vr(T[1])}")
        a(f"s_bitset0_b32 vcc_hi, 31")
        a(f"s_mul_i32 s{sT0}, s{sRB}, {128*1280}")
        a(f"s_add_u32 s{sT0}, s{sT0}, {3*128}")
        a.label(f"{name}_pfj{int(gu)}")
        a(f"v_add_u32 {vr(T[0])}, s{sT0}, {vr(T[0])}")
        a(f"v_mov_b32 {vr(T[1])}, {OOB}")
        a(f"v_cndmask_b32 {vr(vP)}, {vr(T[1])}, {vr(T[0])}, vcc")
        a(f"s_mov_b32 s{sPS}, -1")
        for w, (m, f, st_) in plan.items():
            a(f"s_cmp_eq_u32 s{sWAVE}, {w}")
            a(f"s_cselect_b32 s{sPS}, {st_}, s{sPS}")
    def main(kind, R):
        gu = kind == 'gu'
        NT = 2 if gu else 1
        NW = 3 if gu else 5
        pitchL = 128
        acc, fx, fw, aX, aW, vP = R['acc'], R['fx'], R['fw'], R['aX'], R['aW'], R['vP']
        def reads(s, e1):
            L = []
            b, e = s >> 1, 2*(s & 1) + e1
            for tt in range(NT):
                L.append(f"ds_read_b128 {vr(fx[e1]+4*tt,4)}, {vr(aX+e)} offset:{xslot(b) - XRING + tt*4096}")
            slot = s % 4
            for t in range(NW):
                for u in range(2):
                    L.append(f"ds_read_b64_tr_b16 {vr(fw[e1]+4*t+2*u,2)}, {vr(aW + (slot >> 1)*NW + t)} "
                             f"offset:{(slot & 1)*24576 + (16*e1 + 4*u)*pitchL}")
            return L
        def mfmas(st_, first):
            L = []
            for t in range(NW):
                for tt in range(NT):
                    d = acc + 16*(tt*NW + t)
                    A, B = vr(fw[st_]+4*t, 4), vr(fx[st_]+4*tt, 4)
                    if kind == 'v': A, B = B, A
                    L.append(f"v_mfma_f32_32x32x16_bf16 {vr(d,16)}, {A}, {B}, {'0' if first else vr(d,16)}")
            return L
        def block(M, Rd):
            Rd = list(Rd)
            for m in M:
                a(m)
                for _ in range(2 if gu else 3):
                    if Rd: a.lds(Rd.pop(0), 'f')
            for r in Rd: a.lds(r, 'f')
        a("s_waitcnt lgkmcnt(0)")
        if OPT['prefetch']:
            if gu:
                a(f"s_bitcmp1_b32 s{sWAVE}, 0")
                a(f"s_cselect_b32 s{dW}, s{sWG}, s{sWU}")
                a(f"s_cselect_b32 s{dW+1}, s{sWG+1}, s{sWU+1}")
            else:
                a(f"s_mov_b32 s{dW}, s{sWQ}")
                a(f"s_mov_b32 s{dW+1}, s{sWQ+1}")
            a(f"s_cmp_eq_u32 s{sWAVE}, 5")
            a(f"s_cselect_b32 s{dW}, s{sXP}, s{dW}")
            a(f"s_cselect_b32 s{dW+1}, s{sXP+1}, s{dW+1}")
            a(f"s_mov_b32 s{dW+2}, {D*F*2 if gu else D*3*D*2}")
            a(f"s_cselect_b32 s{dW+2}, {S*D*2}, s{dW+2}")
            a(f"s_mov_b32 s{dW+3}, 0x00020000")
        srd(a, dWS, sWS, WS_SIZE)
        def pf(s):
            if not OPT['prefetch']: return
            if s not in [v[2] for v in pf_plan(gu).values()]: return
            lab = f"{name}_pf{kind}{s}"
            a(f"s_cmp_lg_u32 s{sPS}, {s}")
            a(f"s_cbranch_scc1 {lab}")
            a(f"buffer_load_dword {vr(vP+1)}, {vr(vP)}, {sr(dW,4)}, 0 offen")
            a.label(lab)
        def touch():
            if gu:
                dest_gu()
                a(f"v_lshlrev_b32 {vr(T[0])}, 7, {vr(vL)}")
                a(f"v_cmp_gt_u32 vcc, 24, {vr(vL)}")
                a(f"v_mov_b32 {vr(T[1])}, {OOB}")
                a("s_nop 0")
                a(f"v_cndmask_b32 {vr(T[0])}, {vr(T[1])}, {vr(T[0])}, vcc")
                for r in (sT0, sT1):
                    a(f"buffer_load_dword {vr(vP+1)}, {vr(T[0])}, {sr(dWS,4)}, s{r} offen sc1")
            else:
                dest_qkv(kind)
                a(f"v_mul_u32_u24 {vr(T[0])}, 6554, {vr(vL)}")
                a(f"v_lshrrev_b32 {vr(T[0])}, 16, {vr(T[0])}")
                a(f"v_mul_u32_u24 {vr(T[0])}, {81920 - 1280}, {vr(T[0])}")
                a(f"v_lshl_add_u32 {vr(T[0])}, {vr(vL)}, 7, {vr(T[0])}")
                a(f"v_cmp_gt_u32 vcc, 40, {vr(vL)}")
                a(f"v_mov_b32 {vr(T[1])}, {OOB}")
                a(f"s_add_u32 s{sT1}, s{sT0}, {4*81920}")
                a(f"v_cndmask_b32 {vr(T[0])}, {vr(T[1])}, {vr(T[0])}, vcc")
                for r in (sT0, sT1):
                    a(f"buffer_load_dword {vr(vP+1)}, {vr(T[0])}, {sr(dWS,4)}, s{r} offen sc1")
        if not OPT['pf_after']: pf(0)
        for s in range(NSTEP):
            a.wait(lg='all')
            if s <= LASTB: a("s_barrier")
            if s == 0: a("; @m p1_b0")
            if s == 4: a("; @m p1_b4")
            if s == 10: a("; @m p1_b10")
            if s == LASTB:
                a("; @m p1_last")
                if OPT['stagger']:
                    a(f"s_cmp_ge_u32 s{sWAVE}, 4")
                    a(f"s_cbranch_scc1 {name}_np{kind}")
                    a("s_setprio 1")
                    a.label(f"{name}_np{kind}")
            if s == 0:
                for r in reads(0, 0): a.lds(r, 'f')
                if OPT['pf_after']: pf(0)
            else:
                block(mfmas(1, False), reads(s, 0))
                if hook and s == 5: hook(kind, 0)
                if s == OPT['touch'] and (not gu or OPT['touch_h']): touch()
                pf(s)
            a.wait(lg='all')
            block(mfmas(0, s == 0), reads(s, 1))
        a.wait(lg='all')
        for m in mfmas(1, False): a(m)
        a("s_waitcnt vmcnt(0)")
        a("; @m p1_end")

    def regs(gu):
        rg = Regs(base, 168); R = {}
        R['vP'] = rg.alloc('vP', 2)
        R['aX'] = rg.alloc('aX', 4); R['aW'] = rg.alloc('aW', 6 if gu else 10)
        nx, nw = (8, 12) if gu else (4, 20)
        R['fx'] = [rg.alloc('fx0', nx, 2), rg.alloc('fx1', nx, 2)]
        R['fw'] = [rg.alloc('fw0', nw, 2), rg.alloc('fw1', nw, 2)]
        R['acc'] = rg.alloc('acc', 96 if gu else 80, 2)
        return R
    a(f"s_cmp_ge_u32 s{sCOL}, 6")
    a(f"s_cbranch_scc1 {name}_gu")
    R = regs(False)
    aX, aW, acc, pk = R['aX'], R['aW'], R['acc'], R['fw'][0]
    a(f"s_and_b32 s{sWM}, s{sWAVE}, 3")
    a(f"s_lshr_b32 s{sWN}, s{sWAVE}, 2")
    if OPT['prefetch']: prefetch_setup(False, R['vP'])
    ds_x_addr(aX, 5)
    a(f"v_lshrrev_b32 {vr(T[0])}, 5, {vr(vL)}")
    a(f"v_bfe_u32 {vr(T[1])}, {vr(vL)}, 2, 2")
    a(f"v_lshl_add_u32 {vr(T[0])}, {vr(T[0])}, 3, {vr(T[1])}")
    a(f"v_lshlrev_b32 {vr(T[0])}, 7, {vr(T[0])}")
    a(f"v_lshrrev_b32 {vr(T[1])}, 1, {vr(T[1])}")
    a(f"v_bfe_u32 {vr(T[2])}, {vr(vL)}, 4, 1")
    a(f"v_and_b32 {vr(T[3])}, 3, {vr(vL)}")
    a(f"v_lshl_add_u32 {vr(T[2])}, {vr(T[2])}, 2, {vr(T[3])}")
    a(f"v_lshlrev_b32 {vr(T[2])}, 2, {vr(T[2])}")
    a(f"s_mul_i32 s{sT0}, s{sWN}, 5")
    for t in range(5):
        a(f"s_add_u32 s{sT1}, s{sT0}, {t}")
        a(f"s_lshr_b32 s{sT2}, s{sT1}, 1")
        a(f"s_lshl_b32 s{sT2}, s{sT2}, 6")
        a(f"s_and_b32 s{sT1}, s{sT1}, 1")
        a(f"s_or_b32 s{sT1}, s{sT1}, s{sT2}")
        a(f"v_xor_b32 {vr(T[3])}, s{sT1}, {vr(T[1])}")
        a(f"v_lshl_add_u32 {vr(T[3])}, {vr(T[3])}, 6, {vr(T[0])}")
        a(f"s_cmp_ge_u32 s{sCOL}, 4")
        a(f"s_mov_b32 s{sT2}, {lut(t):#x}")
        a(f"s_cselect_b32 s{sT2}, 0x76543210, s{sT2}")
        a(f"v_bfe_u32 {vr(T[4])}, s{sT2}, {vr(T[2])}, 3")
        a(f"v_lshl_add_u32 {vr(aW+t)}, {vr(T[4])}, 3, {vr(T[3])}")
        a(f"v_add_u32 {vr(aW+5+t)}, 49152, {vr(aW+t)}")
    a(f"s_cbranch_scc1 {name}_v")

    main('qk', R)
    dest_qkv('qk')
    a(f"s_cmp_ge_u32 s{sCOL}, 2")
    a(f"s_cselect_b32 s{sC0}, 1.0, {f2u(QSCALE):#x}")
    a(f"s_mov_b32 s{sC0+1}, s{sC0}")
    a(f"v_lshlrev_b32 {vr(T[0])}, 4, {vr(vL)}")
    a(f"v_and_b32 {vr(T[1])}, 31, {vr(vL)}")
    a(f"v_lshlrev_b32 {vr(T[1])}, 3, {vr(T[1])}")
    a(f"v_lshrrev_b32 {vr(T[2])}, 5, {vr(vL)}")
    a(f"v_mul_u32_u24 {vr(T[2])}, 81920, {vr(T[2])}")
    a(f"v_add_u32 {vr(T[1])}, {vr(T[1])}, {vr(T[2])}")
    def scale_pack(slot, dst):
        b = acc + 4*slot
        a(f"v_pk_mul_f32 {vr(b,2)}, {vr(b,2)}, {sr(sC0,2)}")
        a(f"v_pk_mul_f32 {vr(b+2,2)}, {vr(b+2,2)}, {sr(sC0,2)}")
        a(f"v_cvt_pk_bf16_f32 {vr(dst)}, {vr(b)}, {vr(b+1)}")
        a(f"v_cvt_pk_bf16_f32 {vr(dst+1)}, {vr(b+2)}, {vr(b+3)}")
    for h in range(8):
        d = pk + 4*h
        scale_pack(UNIT_PAIRS[h][0], d); scale_pack(UNIT_PAIRS[h][1], d+2)
        a(f"s_add_u32 s{sT1}, s{sT0}, {h*81920}")
        a(f"buffer_store_dwordx4 {vr(d,4)}, {vr(T[0])}, {sr(dWS,4)}, s{sT1} offen{st}")
        if h & 1:
            d2 = pk + 32 + 2*(h >> 1)
            scale_pack(R_SLOTS[h >> 1], d2)
            a(f"s_add_u32 s{sT2}, s{sT0}, {(h-1)*81920}")
            a(f"buffer_store_dwordx2 {vr(d2,2)}, {vr(T[1])}, {sr(dWS,4)}, s{sT2} offen offset:1024{st}")
    done('qk')

    a.label(f"{name}_v")
    main('v', R)
    dest_qkv('v')
    if VROWS == 21:
        a(f"v_bfe_u32 {vr(T[0])}, {vr(vL)}, 2, 3")
        a(f"v_mul_u32_u24 {vr(T[0])}, {VH}, {vr(T[0])}")
        a(f"v_and_b32 {vr(T[1])}, 3, {vr(vL)}")
        a(f"v_mul_u32_u24 {vr(T[1])}, 336, {vr(T[1])}")
        a(f"v_add_u32 {vr(T[0])}, {vr(T[0])}, {vr(T[1])}")
        for i in range(4):
            a(f"v_mov_b32 {vr(pk+i)}, 0x3f803f80")
        a(f"buffer_store_dwordx4 {vr(pk,4)}, {vr(T[0])}, {sr(dWS,4)}, s{sT0} offen offset:320{st}")
    a(f"v_and_b32 {vr(T[1])}, 31, {vr(vL)}")
    a(f"v_lshrrev_b32 {vr(T[2])}, 5, {vr(vL)}")
    a(f"v_mul_u32_u24 {vr(T[2])}, {VROWS*16}, {vr(T[2])}")
    for t in range(5):
        a(f"v_add_u32 {vr(T[3])}, {32*t}, {vr(T[1])}")
        a(f"v_mul_u32_u24 {vr(T[4])}, 3277, {vr(T[3])}")
        a(f"v_lshrrev_b32 {vr(T[4])}, 16, {vr(T[4])}")
        a(f"v_mul_u32_u24 {vr(T[5])}, 20, {vr(T[4])}")
        a(f"v_sub_u32 {vr(T[3])}, {vr(T[3])}, {vr(T[5])}")
        a(f"v_mul_u32_u24 {vr(T[4])}, {VH}, {vr(T[4])}")
        a(f"v_lshl_add_u32 {vr(T[3])}, {vr(T[3])}, 4, {vr(T[4])}")
        a(f"v_add_u32 {vr(aW+t)}, {vr(T[3])}, {vr(T[2])}")
    for t in range(5):
        for p in range(2):
            d = pk + 4 + 4*((2*t + p) % 8)
            b = acc + 16*t + 8*p
            for i in range(4):
                a(f"v_cvt_pk_bf16_f32 {vr(d+i)}, {vr(b+2*i)}, {vr(b+2*i+1)}")
            a(f"buffer_store_dwordx4 {vr(d,4)}, {vr(aW+t)}, {sr(dWS,4)}, s{sT0} offen offset:{VROWS*32*p}{st}")
    done('v')

    a.label(f"{name}_gu")
    R = regs(True)
    aX, aW, acc, pk = R['aX'], R['aW'], R['acc'], R['fw'][0]
    a(f"s_and_b32 s{sWM}, s{sWAVE}, 1")
    a(f"s_lshr_b32 s{sWN}, s{sWAVE}, 1")
    if OPT['prefetch']: prefetch_setup(True, R['vP'])
    ds_x_addr(aX, 6)
    a(f"v_lshrrev_b32 {vr(T[0])}, 5, {vr(vL)}")
    a(f"v_bfe_u32 {vr(T[1])}, {vr(vL)}, 2, 2")
    a(f"v_lshl_add_u32 {vr(T[0])}, {vr(T[0])}, 3, {vr(T[1])}")
    a(f"v_lshlrev_b32 {vr(T[0])}, 7, {vr(T[0])}")
    a(f"v_bfe_u32 {vr(T[2])}, {vr(vL)}, 1, 1")
    a(f"v_mul_u32_u24 {vr(T[3])}, 12288, {vr(T[2])}")
    a(f"v_add_u32 {vr(T[0])}, {vr(T[0])}, {vr(T[3])}")
    a(f"v_lshrrev_b32 {vr(T[1])}, 1, {vr(T[1])}")
    a(f"v_lshl_add_u32 {vr(T[1])}, {vr(T[2])}, 1, {vr(T[1])}")
    a(f"v_bfe_u32 {vr(T[2])}, {vr(vL)}, 4, 1")
    a(f"v_lshl_add_u32 {vr(T[0])}, {vr(T[2])}, 4, {vr(T[0])}")
    a(f"v_and_b32 {vr(T[2])}, 1, {vr(vL)}")
    a(f"v_lshl_add_u32 {vr(T[0])}, {vr(T[2])}, 3, {vr(T[0])}")
    a(f"s_mul_i32 s{sT0}, s{sWN}, 3")
    for t in range(3):
        a(f"s_add_u32 s{sT1}, s{sT0}, {t}")
        a(f"s_lshr_b32 s{sT2}, s{sT1}, 2")
        a(f"s_lshl_b32 s{sT2}, s{sT2}, 7")
        a(f"s_and_b32 s{sT1}, s{sT1}, 3")
        a(f"s_or_b32 s{sT1}, s{sT1}, s{sT2}")
        a(f"v_xor_b32 {vr(T[3])}, s{sT1}, {vr(T[1])}")
        a(f"v_lshl_add_u32 {vr(aW+t)}, {vr(T[3])}, 5, {vr(T[0])}")
        a(f"v_add_u32 {vr(aW+3+t)}, 49152, {vr(aW+t)}")
    main('gu', R)
    dest_gu()
    a(f"s_mov_b32 s{sC0}, {f2u(-math.log2(math.e)):#x}")
    a(f"s_mov_b32 s{sC0+1}, s{sC0}")
    a(f"s_mov_b32 s{sC1}, 1.0")
    a(f"s_mov_b32 s{sC1+1}, 1.0")
    a(f"v_lshlrev_b32 {vr(T[0])}, 4, {vr(vL)}")
    hold = OPT['hold_h'] and hook is not None
    order = [(tt, t) for t in range(3) for tt in range(2)]
    if hold:
        order = order[::-1]
        assert acc + 80 == 140
        a(f"s_mov_b32 s{sH0}, s{sT0}")
        a(f"s_mov_b32 s{sH1}, s{sT1}")
    for n, (tt, t) in enumerate(order):
        b = acc + 16*(tt*3 + t)
        d = HOLD[n][0] if hold else pk + 4*n
        gs = [b, b+2, b+8, b+10]; us = [b+4, b+6, b+12, b+14]
        for q in gs: a(f"v_pk_mul_f32 {vr(q,2)}, {vr(q,2)}, {sr(sC0,2)}")
        for q in gs:
            a(f"v_exp_f32 {vr(q)}, {vr(q)}"); a(f"v_exp_f32 {vr(q+1)}, {vr(q+1)}")
        for q in gs: a(f"v_pk_add_f32 {vr(q,2)}, {vr(q,2)}, {sr(sC1,2)}")
        for q in gs:
            a(f"v_rcp_f32 {vr(q)}, {vr(q)}"); a(f"v_rcp_f32 {vr(q+1)}, {vr(q+1)}")
        for q, u in zip(gs, us): a(f"v_pk_mul_f32 {vr(q,2)}, {vr(q,2)}, {vr(u,2)}")
        for i, q in enumerate(gs): a(f"v_cvt_pk_bf16_f32 {vr(d+i)}, {vr(q)}, {vr(q+1)}")
        if hold: assert HOLD[n][1:] == (tt, t)
        else: a(f"buffer_store_dwordx4 {vr(d,4)}, {vr(T[0])}, {sr(dWS,4)}, s{sT1 if tt else sT0} offen offset:{1024*t}{st}")
    done('gu')

def misc(a, name, vL, T, base, st, done, hook=None):
    rg = Regs(base, 168)
    zz = rg.alloc('z', 4); aR = rg.alloc('aR', 3); vA = rg.alloc('vA', 20)
    gw = rg.alloc('gw', 20, 2); xregs = [rg.alloc(f'x{q}', 20, 2) for q in range(4)]
    sU, sMI = sWM, sWN
    sKS, sHF, sSRC, sG = 60, 61, 62, 63
    sDST, sDS2 = (64, 98), (65, 99)
    a(f"s_lshl_b32 s{sMI}, s{sXCD}, 1")
    a(f"s_add_u32 s{sMI}, s{sMI}, s{sSLOT}")
    a(f"s_sub_u32 s{sMI}, s{sMI}, 30")
    a(f"s_mul_i32 s{sU}, s{sMI}, 12")
    a(f"s_add_u32 s{sU}, s{sU}, s{sWAVE}")
    a.vm = []; a.lg = []
    for i in range(10):
        a(f"v_add_u32 {vr(T[2])}, {64*i}, {vr(vL)}")
        a(f"v_mul_u32_u24 {vr(T[3])}, 1639, {vr(T[2])}")
        a(f"v_lshrrev_b32 {vr(T[3])}, 16, {vr(T[3])}")
        a(f"v_mul_u32_u24 {vr(T[4])}, 40, {vr(T[3])}")
        a(f"v_sub_u32 {vr(T[4])}, {vr(T[2])}, {vr(T[4])}")
        a(f"v_and_b32 {vr(T[5])}, 2, {vr(T[3])}")
        a(f"v_lshlrev_b32 {vr(T[5])}, 1, {vr(T[5])}")
        a(f"v_xor_b32 {vr(T[4])}, {vr(T[4])}, {vr(T[5])}")
        a(f"v_lshlrev_b32 {vr(T[4])}, 4, {vr(T[4])}")
        a(f"v_mul_u32_u24 {vr(T[5])}, 1280, {vr(T[3])}")
        a(f"v_add_u32 {vr(vA+i)}, {vr(T[5])}, {vr(T[4])}")
        a(f"v_lshrrev_b32 {vr(T[5])}, 2, {vr(T[3])}")
        a(f"v_mul_u32_u24 {vr(T[5])}, {16*1280}, {vr(T[5])}")
        a(f"v_add_u32 {vr(vA+10+i)}, {vr(vA+i)}, {vr(T[5])}")
    a(f"v_lshrrev_b32 {vr(T[2])}, 5, {vr(vL)}")
    a(f"v_bfe_u32 {vr(T[3])}, {vr(vL)}, 2, 2")
    a(f"v_lshl_add_u32 {vr(T[2])}, {vr(T[2])}, 2, {vr(T[3])}")
    a(f"v_mul_u32_u24 {vr(T[2])}, 640, {vr(T[2])}")
    a(f"v_bfe_u32 {vr(T[4])}, {vr(vL)}, 4, 1")
    a(f"v_and_b32 {vr(T[5])}, 3, {vr(vL)}")
    a(f"v_lshl_add_u32 {vr(T[4])}, {vr(T[4])}, 2, {vr(T[5])}")
    a(f"v_lshl_add_u32 {vr(T[2])}, {vr(T[4])}, 3, {vr(T[2])}")
    a(f"s_mul_i32 s{sWW}, s{sWAVE}, 10240")
    a(f"v_add_u32 {vr(T[2])}, s{sWW}, {vr(T[2])}")
    a(f"v_lshrrev_b32 {vr(T[3])}, 1, {vr(T[3])}")
    a(f"v_lshl_add_u32 {vr(aR)}, {vr(T[3])}, 6, {vr(T[2])}")
    a(f"v_xor_b32 {vr(T[3])}, 1, {vr(T[3])}")
    a(f"v_lshl_add_u32 {vr(aR+1)}, {vr(T[3])}, 6, {vr(T[2])}")
    a(f"v_lshlrev_b32 {vr(aR+2)}, 4, {vr(vL)}")
    a("s_waitcnt lgkmcnt(0)")
    srd(a, dX, sXP, S*D*2)
    srd(a, dWS, sWS, WS_SIZE)
    if hook: hook('m', 0)
    srd(a, dG, sGW, D*2)
    a("; @m m_set")
    a(f"s_cmp_ge_u32 s{sWAVE}, 8")
    a(f"s_cbranch_scc1 {name}_nogate")
    a(f"s_lshl_b32 s{sG}, s{sMI}, 3")
    a(f"s_add_u32 s{sG}, s{sG}, s{sWAVE}")
    a(f"v_and_b32 {vr(T[0])}, 15, {vr(vL)}")
    a(f"v_lshlrev_b32 {vr(T[0])}, 4, {vr(T[0])}")
    for i in range(5):
        a.vmem(f"buffer_load_dwordx4 {vr(gw+4*i,4)}, {vr(T[0])}, {sr(dG,4)}, 0 offen offset:{256*i}", 'gw')
    a(f"v_lshrrev_b32 {vr(T[1])}, 4, {vr(vL)}")
    a(f"v_mul_u32_u24 {vr(T[2])}, 1280, {vr(T[1])}")
    a(f"v_add_u32 {vr(T[0])}, {vr(T[0])}, {vr(T[2])}")
    for q in range(4):
        a(f"s_lshl_b32 s{sT0}, s{sG}, 4")
        a(f"s_add_u32 s{sT0}, s{sT0}, {4*q}")
        a(f"s_mul_i32 s{sT0}, s{sT0}, 1280")
        for i in range(5):
            a.vmem(f"buffer_load_dwordx4 {vr(xregs[q]+4*i,4)}, {vr(T[0])}, {sr(dX,4)}, s{sT0} offen offset:{256*i}", ('gx', q))
    a.label(f"{name}_nogate")
    def unit_issue(r):
        L = lambda x: f"{name}_u{r}{x}"
        a(f"s_lshr_b32 s{sKS}, s{sU}, 1")
        a(f"s_and_b32 s{sHF}, s{sU}, 1")
        a(f"s_cmp_ge_u32 s{sKS}, 108")
        a(f"s_cbranch_scc1 {L('wo')}")
        srd(a, dW, sWD, F*D*2)
        a(f"s_mul_i32 s{sSRC}, s{sKS}, {16*1280}")
        a(f"s_mul_i32 s{sDST[r]}, s{sHF}, {10*110592}")
        a(f"s_lshl_b32 s{sT0}, s{sKS}, 10")
        a(f"s_add_u32 s{sDST[r]}, s{sDST[r]}, s{sT0}")
        a(f"s_add_u32 s{sDST[r]}, s{sDST[r]}, {WDF}")
        a(f"s_mov_b32 s{sDS2[r]}, 110592")
        a(f"s_branch {L('plain')}")
        a.label(L('wo'))
        srd(a, dW, sWO, D*D*2)
        a(f"s_sub_u32 s{sKS}, s{sKS}, 108")
        a(f"s_mul_i32 s{sDST[r]}, s{sHF}, {10*40960}")
        a(f"s_lshl_b32 s{sT0}, s{sKS}, 10")
        a(f"s_add_u32 s{sDST[r]}, s{sDST[r]}, s{sT0}")
        a(f"s_add_u32 s{sDST[r]}, s{sDST[r]}, {WOF}")
        a(f"s_mov_b32 s{sDS2[r]}, 40960")
        a(f"s_mul_i32 s{sSRC}, s{sKS}, {20*1280}")
        a(f"s_cmp_lt_u32 s{sKS}, 32")
        a(f"s_cbranch_scc1 {L('plain')}")
        a(f"s_sub_u32 s{sKS}, s{sKS}, 32")
        a(f"s_mul_i32 s{sSRC}, s{sKS}, {80*1280}")
        a(f"s_add_u32 s{sSRC}, s{sSRC}, {16*1280}")
        def unit_dma(b):
            a(f"s_mul_i32 s{sT0}, s{sHF}, 640")
            a(f"s_add_u32 s{sSRC}, s{sSRC}, s{sT0}")
            for i in range(10):
                a(f"s_add_u32 m0, s{sWW}, {1024*i}")
                a("s_nop 0")
                a(f"buffer_load_dwordx4 {vr(b+i)}, {sr(dW,4)}, s{sSRC} offen lds")
        unit_dma(vA + 10)
        a(f"s_branch {L('go')}")
        a.label(L('plain'))
        unit_dma(vA)
        a.label(L('go'))
    def unit_read(fr):
        for n in range(10):
            if n == 7: a("s_waitcnt lgkmcnt(6)")
            for u in range(2):
                a(f"ds_read_b64_tr_b16 {vr(fr+4*n+2*u,2)}, {vr(aR + (n & 1))} offset:{128*(n >> 1) + u*8*640}")
        a("s_waitcnt lgkmcnt(0)")
    def unit_store(r, fr):
        for n in range(10):
            a(f"buffer_store_dwordx4 {vr(fr+4*n,4)}, {vr(aR+2)}, {sr(dWS,4)}, s{sDST[r]} offen{st}")
            a(f"s_add_u32 s{sDST[r]}, s{sDST[r]}, s{sDS2[r]}")
    unit_issue(0)
    a("; @m m_iss")
    a("s_waitcnt vmcnt(0)")
    a("; @m m_w1")
    a.vm = []
    a(f"s_cmp_ge_u32 s{sWAVE}, 8")
    a(f"s_cbranch_scc1 {name}_nogate2")
    if True:
        for q in range(4):
            a.wait(vm=('gx', q))
            a(f"v_mov_b32 {vr(zz+q)}, 0")
            for i in range(20):
                a(f"v_dot2_f32_bf16 {vr(zz+q)}, {vr(xregs[q]+i)}, {vr(gw+i)}, {vr(zz+q)}")
        a.nop(3)
        for sh in ("row_ror:8", "row_ror:4", "row_ror:2", "row_ror:1"):
            for q in range(4):
                a(f"v_add_f32_dpp {vr(zz+q)}, {vr(zz+q)}, {vr(zz+q)} {sh} row_mask:0xf bank_mask:0xf")
        a(f"v_and_b32 {vr(T[2])}, 15, {vr(vL)}")
        for q in range(1, 4):
            a(f"v_cmp_eq_u32 vcc, {q}, {vr(T[2])}")
            a("s_nop 1")
            a(f"v_cndmask_b32 {vr(zz)}, {vr(zz)}, {vr(zz+q)}, vcc")
        a(f"v_mul_f32 {vr(zz)}, {f2u(-math.log2(math.e)):#x}, {vr(zz)}")
        a(f"v_exp_f32 {vr(zz)}, {vr(zz)}")
        a("s_nop 0")
        a(f"v_add_f32 {vr(zz)}, 1.0, {vr(zz)}")
        a(f"v_rcp_f32 {vr(zz)}, {vr(zz)}")
        a(f"v_lshl_add_u32 {vr(T[3])}, {vr(T[2])}, 2, {vr(T[1])}")
        a(f"v_lshlrev_b32 {vr(T[3])}, 2, {vr(T[3])}")
        a(f"v_cmp_gt_u32 vcc, 4, {vr(T[2])}")
        a(f"v_mov_b32 {vr(T[5])}, {OOB}")
        a("s_nop 0")
        a(f"v_cndmask_b32 {vr(T[3])}, {vr(T[5])}, {vr(T[3])}, vcc")
        a(f"s_lshl_b32 s{sT0}, s{sG}, 6")
        a(f"s_add_u32 s{sT0}, s{sT0}, {GG}")
        a(f"buffer_store_dword {vr(zz)}, {vr(T[3])}, {sr(dWS,4)}, s{sT0} offen{st}")
    a.label(f"{name}_nogate2")
    unit_read(xregs[0])
    a(f"s_add_u32 s{sU}, s{sWAVE}, 4")
    a(f"s_cmp_ge_u32 s{sU}, 12")
    a(f"s_cselect_b32 s{sT0}, 12, 0")
    a(f"s_sub_u32 s{sU}, s{sU}, s{sT0}")
    a(f"s_lshl_b32 s{sU}, s{sU}, 4")
    a(f"s_add_u32 s{sU}, s{sU}, s{sMI}")
    a(f"s_add_u32 s{sU}, s{sU}, 192")
    a(f"s_cmp_lt_u32 s{sU}, 296")
    a(f"s_cbranch_scc1 {name}_two")
    unit_store(0, xregs[0])
    a(f"s_branch {name}_misc_done")
    a.label(f"{name}_two")
    a("; @m m_rd")
    unit_issue(1)
    unit_store(0, xregs[0])
    a("; @m m_st")
    a("s_waitcnt vmcnt(10)")
    a("; @m m_w2")
    unit_read(xregs[2])
    unit_store(1, xregs[2])
    a.label(f"{name}_misc_done")
    done()

def emit_k1(name, st=""):
    a = Asm()
    a.raw(f".globl {name}\n.p2align 8\n.type {name},@function\n{name}:")
    vL = 1; T = list(range(2, 8)); base = 8
    entry(a, name, vL, T[0])
    a(f"s_cmp_ge_u32 s{sSLOT}, 30")
    a(f"s_cbranch_scc1 {name}_misc")
    a(f"s_cmp_lt_u32 s{sWAVE}, 8")
    a(f"s_cbranch_scc1 {name}_main")
    loader(a, name, vL, T, base, lambda: a("s_endpgm"))
    a.label(f"{name}_main")
    compute(a, name, vL, T, base, st, lambda k: a("s_endpgm"))
    a.label(f"{name}_misc")
    misc(a, name, vL, T, base, st, lambda: None)
    a.label(f"{name}_end")
    a("s_endpgm")
    return a.text(), kd(name, 168, 102), 163840
```

```python
from asmlib import *
from common import *
import p1
from p1 import (sWS, sOUT, dWS, dG, sXCD, sSLOT, sWAVE, sCOL, sRB, sT0, sT1, sT2, sT3, sHW)

KS = [0, 20480, 61440, 0]
VS = [131072, 40960, 81920, 131072]
QS = 151552
CTR = 161792
XCH = 61440
LDS = 163840
sHEAD, sQB, sKB, sVB, sQG, sKH, sTB, sCG, sKO, sL5, sOB, sI = 4, 5, 6, 7, 8, 9, 10, 11, 12, 13, 14, 15
sEX = 16
sM0 = 18
sM1 = 46
sPUB = 45
sTO = 48
sDBG = 96
OPT = dict(helper=True, publish_t=3, tail=True, inter=True, xprio=0, aprio=None, pcycle=None, b8=20, touch_o=False, dcuts=(9, 18, 23), hstart=0, cprio=3, xsleep=0, osleep=1, ppoll=False, psleep=2, small0=True, sto='')
BAR = (2, 5, 15, 23, 27)
NE = 7
DUMP = [QS, 86016, 110592, 120832]
OLO, OHI = 0, 131072
sWB, sFO, sXO = 50, 51, 52
dO = 24

def decode(a):
    a(f"s_lshr_b32 s{sT0}, s{sSLOT}, 3")
    a(f"s_lshl_b32 s{sHEAD}, s{sXCD}, 2")
    a(f"s_add_u32 s{sHEAD}, s{sHEAD}, s{sT0}")
    a(f"s_and_b32 s{sQB}, s{sSLOT}, 7")
    a(f"s_mul_i32 s{sKB}, s{sHEAD}, 81920")
    a(f"s_add_u32 s{sVB}, s{sKB}, {VF}")
    assert VH == 81920 and QF == 0

def out_tile(a):
    a(f"s_lshr_b32 s{sTB}, s{sXCD}, 1")
    a(f"s_lshl_b32 s{sTB}, s{sTB}, 4")
    a(f"s_lshr_b32 s{sT0}, s{sSLOT}, 1")
    a(f"s_add_u32 s{sTB}, s{sTB}, s{sT0}")
    a(f"s_and_b32 s{sCG}, s{sXCD}, 1")
    a(f"s_lshl_b32 s{sCG}, s{sCG}, 1")
    a(f"s_and_b32 s{sT0}, s{sSLOT}, 1")
    a(f"s_add_u32 s{sCG}, s{sCG}, s{sT0}")
    a(f"s_mul_i32 s{sWB}, s{sCG}, {5*40960}")
    a(f"s_add_u32 s{sWB}, s{sWB}, {WOF}")

def poll(a, lab, vaddr, vtmp, want, srd_=dWS, soff="0", op="ne", sleep=None):
    a(f"s_mov_b32 s{sTO}, 0x4000")
    a.label(lab)
    a(f"buffer_load_dword {vr(vtmp)}, {vr(vaddr)}, {sr(srd_,4)}, {soff} offen sc1")
    a("s_waitcnt vmcnt(0)")
    a(f"v_cmp_{op}_u32 vcc, {want}, {vr(vtmp)}")
    a(f"s_cbranch_vccz {lab}_ok")
    if sleep is None: sleep = OPT['psleep']
    if sleep: a(f"s_sleep {sleep}")
    a(f"s_sub_u32 s{sTO}, s{sTO}, 1")
    a(f"s_cbranch_scc0 {lab}")
    a.label(f"{lab}_ok")
    a.vm = []

def poll_fast(a, lab, vaddr, vt, soff):
    ld = lambda r: a(f"buffer_load_dword {vr(r)}, {vr(vaddr)}, {sr(dWS,4)}, {soff} offen sc1")
    a(f"s_mov_b32 s{sTO}, 0x2000")
    a("s_waitcnt vmcnt(0)")
    for i in range(2):
        ld(vt + i); a("s_sleep 2")
    a.label(lab)
    for i in range(3):
        ld(vt + (i + 2) % 3)
        a("s_waitcnt vmcnt(2)")
        a(f"v_cmp_ne_u32 vcc, 1, {vr(vt + i)}")
        a(f"s_cbranch_vccz {lab}_ok")
        a("s_sleep 1")
    a(f"s_sub_u32 s{sTO}, s{sTO}, 1")
    a(f"s_cbranch_scc0 {lab}")
    a.label(f"{lab}_ok")
    a.vm = ['p', 'p']

def publish(a, lab, vL, T, nwaves, st, fused):
    if not fused: return
    a("s_waitcnt vmcnt(0)")
    a(f"v_mov_b32 {vr(T[0])}, {CTR}")
    a(f"v_mov_b32 {vr(T[1])}, 1")
    a("s_mov_b64 exec, 1")
    a(f"ds_add_rtn_u32 {vr(T[2])}, {vr(T[0])}, {vr(T[1])}")
    a("s_mov_b64 exec, -1")
    flag_addr(a, vL, T[0], T[3])
    a("s_waitcnt lgkmcnt(0)")
    a(f"v_readfirstlane_b32 s{sT0}, {vr(T[2])}")
    a("s_nop 3")
    a(f"s_cmp_lg_u32 s{sT0}, {nwaves-1}")
    a(f"s_cbranch_scc1 {lab}")
    a(f"buffer_store_dword {vr(T[1])}, {vr(T[0])}, {sr(dWS,4)}, s{sPUB} offen sc1")
    a.label(lab)

def flag_addr(a, vL, dst, tmp):
    a(f"v_lshlrev_b32 {vr(dst)}, 10, {vr(vL)}")
    a(f"s_cmp_lt_u32 s{sPUB}, {FH}")
    a(f"s_cselect_b32 s{sT1}, 8, 1")
    a(f"v_mov_b32 {vr(tmp)}, {OOB}")
    a(f"v_cmp_gt_u32 vcc, s{sT1}, {vr(vL)}")
    a("s_nop 1")
    a(f"v_cndmask_b32 {vr(dst)}, {vr(tmp)}, {vr(dst)}, vcc")

def reset_flags(a, name, vL, T):
    a(f"s_lshl_b32 s{sT0}, s{sCOL}, 7")
    a(f"s_lshl_b32 s{sT1}, s{sRB}, 2")
    a(f"s_add_u32 s{sPUB}, s{sT0}, s{sT1}")
    a(f"s_add_u32 s{sPUB}, s{sPUB}, {FQ}")
    a(f"s_cmp_lt_u32 s{sCOL}, 6")
    a(f"s_cbranch_scc1 {name}_pubq")
    a(f"s_lshl_b32 s{sT0}, s{sRB}, 7")
    a(f"s_lshl_b32 s{sT1}, s{sCOL}, 2")
    a(f"s_add_u32 s{sPUB}, s{sT0}, s{sT1}")
    a(f"s_add_u32 s{sPUB}, s{sPUB}, {FH - 24}")
    a.label(f"{name}_pubq")
    a(f"s_cmp_lt_u32 s{sSLOT}, 30")
    a(f"s_cbranch_scc1 {name}_pubg")
    a(f"s_lshl_b32 s{sT0}, s{sXCD}, 1")
    a(f"s_add_u32 s{sT0}, s{sT0}, s{sSLOT}")
    a(f"s_lshl_b32 s{sT0}, s{sT0}, 2")
    a(f"s_add_u32 s{sPUB}, s{sT0}, {FM - 120}")
    a.label(f"{name}_pubg")
    a(f"s_cmp_lg_u32 s{sWAVE}, 0")
    a(f"s_cbranch_scc1 {name}_noreset")
    a(f"v_mov_b32 {vr(T[0])}, {CTR}")
    for i in range(4): a(f"v_mov_b32 {vr(T[2]+i)}, 0")
    a(f"ds_write_b64 {vr(T[0])}, {vr(T[2],2)}")
    a(f"v_lshlrev_b32 {vr(T[0])}, 4, {vr(vL)}")
    a("s_waitcnt lgkmcnt(0)")
    a(f"s_cmp_ge_u32 s2, {NRESET}")
    a(f"s_cbranch_scc1 {name}_noreset")
    srd(a, dWS, sWS, WS_SIZE)
    srd(a, dG, sDBG, 256)
    a(f"s_lshl_b32 s{sT0}, s2, 10")
    a(f"s_add_u32 s{sT0}, s{sT0}, {FL}")
    a(f"buffer_store_dwordx4 {vr(T[2],4)}, {vr(T[0])}, {sr(dWS,4)}, s{sT0} offen sc1")
    a.label(f"{name}_noreset")

NRESET = 44
def count_in(a, lab, T, later):
    a(f"s_cmp_lg_u32 s{sWAVE}, 0")
    a(f"s_cbranch_scc1 {lab}")
    a(f"s_cmp_ge_u32 s2, {NRESET}")
    a(f"s_cbranch_scc1 {lab}")
    srd(a, dG, sDBG, 256)
    a(f"v_mov_b32 {vr(T[0])}, 0")
    a(f"v_mov_b32 {vr(T[1])}, 1")
    a(f"s_waitcnt vmcnt({later})")
    a("s_mov_b64 exec, 1")
    a(f"buffer_atomic_add {vr(T[1])}, {vr(T[0])}, {sr(dG,4)}, 0 offen")
    a("s_mov_b64 exec, -1")
    a.label(lab)

def wait_cleared(a, lab, T, only):
    a(f"s_cmp_lg_u32 s{sWAVE}, {only}")
    a(f"s_cbranch_scc1 {lab}_skip")
    srd(a, dG, sDBG, 256)
    a(f"v_mov_b32 {vr(T[0])}, 0")
    keep = list(a.vm)
    poll(a, lab, T[0], T[1], NRESET, dG, op='gt')
    a.vm = keep
    a.label(f"{lab}_skip")

def attention(a, name, vL, T, base, st, fused):
    rg = Regs(base, 168)
    v16 = rg.alloc('v16'); vB8 = rg.alloc('vB8'); vVo = rg.alloc('vVo')
    aK = [rg.alloc('aK0'), rg.alloc('aK1')]; aKb = [rg.alloc('aKb0'), rg.alloc('aKb1')]
    aV = [rg.alloc('aV0'), rg.alloc('aV1'), rg.alloc('aV2')]
    vG = rg.alloc('vG')
    tail = fused and OPT['tail']
    Qa = [rg.alloc('Qa0', 4, 2), rg.alloc('Qa1', 4, 2)]; Qb = [rg.alloc('Qb0', 2, 2), rg.alloc('Qb1', 2, 2)]
    Ka = [rg.alloc('Ka0', 4, 2), rg.alloc('Ka1', 4, 2)]; Kb = [rg.alloc('Kb0', 2, 2), rg.alloc('Kb1', 2, 2)]
    Vf = [rg.alloc('V0', 8, 2), rg.alloc('V1', 8, 2)]
    P = [rg.alloc('P0', 8, 2), rg.alloc('P1', 8, 2)]
    Sx = [rg.alloc('S0', 16, 2), rg.alloc('S1', 16, 2)]
    O = [rg.alloc('O0', 16, 2), rg.alloc('O1', 16, 2)]
    WE = rg.alloc('WE', 4*NE, 2)
    a.vm = []; a.lg = []
    a("s_setprio 0")
    decode(a)
    a(f"s_and_b32 s{sQG}, s{sWAVE}, 3")
    a(f"s_lshr_b32 s{sKH}, s{sWAVE}, 2")
    a(f"s_add_u32 s{sKB}, s{sKB}, {KF}")
    a(f"s_mov_b32 s{sEX}, 0xfffff")
    a(f"s_mov_b32 s{sEX+1}, 0xfffff")
    a(f"v_lshlrev_b32 {vr(v16)}, 4, {vr(vL)}")
    a(f"v_and_b32 {vr(T[0])}, 31, {vr(vL)}")
    a(f"v_lshrrev_b32 {vr(T[1])}, 5, {vr(vL)}")
    a(f"v_lshlrev_b32 {vr(T[2])}, 2, {vr(T[1])}")
    a(f"v_lshl_add_u32 {vr(vB8)}, {vr(T[0])}, 3, {vr(T[2])}")
    def operand_consts():
        a(f"v_cmp_gt_u32 vcc, 32, {vr(vL)}")
        a(f"v_mov_b32 {vr(T[4])}, 0x3f80")
        a(f"v_mov_b32 {vr(T[3])}, 0x3f803f80")
        a(f"v_cndmask_b32 {vr(Kb[0]+1)}, {vr(T[4])}, {vr(T[3])}, vcc")
        a(f"v_and_b32 {vr(T[4])}, 31, {vr(vL)}")
        a(f"v_cmp_eq_u32 vcc, 20, {vr(T[4])}")
        a(f"v_mov_b32 {vr(Kb[1]+1)}, {vr(Kb[0]+1)}")
        a("s_nop 0")
        a(f"v_cndmask_b32 {vr(T[4])}, 0, {vr(T[3])}, vcc")
        for i in range(16): a(f"v_mov_b32 {vr(Vf[0]+i)}, {vr(T[4])}")
    operand_consts()
    a(f"v_mov_b32 {vr(Qb[0]+1)}, 0")
    a(f"v_mov_b32 {vr(Qb[1]+1)}, 0")
    assert Vf[1] == Vf[0] + 8
    a(f"s_mul_i32 s{sT1}, s{sKH}, {8*1280}")
    a(f"v_add_u32 {vr(aK[0])}, s{sT1}, {vr(v16)}")
    a(f"v_add_u32 {vr(aKb[0])}, s{sT1}, {vr(vB8)}")
    a(f"v_add_u32 {vr(aKb[0])}, 1024, {vr(aKb[0])}")
    a(f"v_add_u32 {vr(aK[1])}, {KS[2]}, {vr(aK[0])}")
    a(f"v_add_u32 {vr(aKb[1])}, {KS[2]}, {vr(aKb[0])}")
    a(f"v_mul_u32_u24 {vr(T[3])}, 20, {vr(T[1])}")
    a(f"v_add_lshl_u32 {vr(vVo)}, {vr(T[0])}, {vr(T[3])}, 4")
    a(f"v_add_u32 {vr(T[3])}, s{sT1}, {vr(vVo)}")
    for i in range(3): a(f"v_add_u32 {vr(aV[i])}, {VS[i]}, {vr(T[3])}")
    a(f"s_mul_i32 s{sT1}, s{sQG}, 2560")
    a(f"s_add_u32 s{sT1}, s{sT1}, {QS}")
    a(f"v_add_u32 {vr(T[4])}, s{sT1}, {vr(v16)}")
    a(f"v_add_u32 {vr(T[5])}, s{sT1}, {vr(vB8)}")

    def qk(q, kbuf):
        return [f"v_mfma_f32_32x32x16_bf16 {vr(Sx[q],16)}, {vr(Ka[kbuf],4)}, {vr(Qa[q],4)}, 0",
                f"v_mfma_f32_32x32x8_bf16 {vr(Sx[q],16)}, {vr(Kb[kbuf],2)}, {vr(Qb[q],2)}, {vr(Sx[q],16)}"]
    def pv(q, vbuf, first):
        return [f"v_mfma_f32_32x32x16_bf16 {vr(O[q],16)}, {vr(Vf[vbuf],4)}, {vr(P[q],4)}, {'0' if first else vr(O[q],16)}",
                f"v_mfma_f32_32x32x16_bf16 {vr(O[q],16)}, {vr(Vf[vbuf]+4,4)}, {vr(P[q]+4,4)}, {vr(O[q],16)}"]
    def max16(src, dst, init=None):
        a(f"v_max3_f32 {vr(dst)}, {vr(src)}, {vr(src+1)}, {vr(src+2 if init is None else init)}")
        i = 3 if init is None else 2
        while i < 16:
            if i + 1 < 16:
                a(f"v_max3_f32 {vr(dst)}, {vr(dst)}, {vr(src+i)}, {vr(src+i+1)}"); i += 2
            else:
                a(f"v_max_f32 {vr(dst)}, {vr(dst)}, {vr(src+i)}"); i += 1
    def set_shift(m, q):
        t0, t1 = T[3], T[4]
        a(f"v_mov_b32 {vr(t0)}, {vr(m)}")
        a("s_nop 1")
        a(f"v_permlane32_swap_b32 {vr(m)}, {vr(t0)}")
        a(f"v_max_f32 {vr(m)}, {vr(m)}, {vr(t0)}")
        a(f"v_sub_f32 {vr(m)}, 0, {vr(m)}")
        a(f"v_and_b32 {vr(t0)}, 0xffff0000, {vr(m)}")
        a(f"v_sub_f32 {vr(m)}, {vr(m)}, {vr(t0)}")
        a(f"v_and_b32 {vr(t1)}, 0xffff0000, {vr(m)}")
        a(f"v_sub_f32 {vr(m)}, {vr(m)}, {vr(t1)}")
        a(f"v_cmp_gt_u32 vcc, 32, {vr(vL)}")
        a(f"v_lshrrev_b32 {vr(t0)}, 16, {vr(t0)}")
        a(f"v_or_b32 {vr(t0)}, {vr(t0)}, {vr(t1)}")
        a(f"v_lshrrev_b32 {vr(m)}, 16, {vr(m)}")
        a(f"v_cndmask_b32 {vr(Qb[q]+1)}, {vr(m)}, {vr(t0)}, vcc")
    def kread(t):
        c, i = t >> 3, t & 7
        s1 = 1 if c == 2 else 0
        off = (0 if s1 else KS[c]) + i*1280
        return [f"ds_read_b128 {vr(Ka[t&1],4)}, {vr(aK[s1])} offset:{off}",
                f"ds_read_b32 {vr(Kb[t&1])}, {vr(aKb[s1])} offset:{off}"]
    def vread(t):
        c, i = t >> 3, t & 7
        return [f"ds_read_b128 {vr(Vf[t&1]+4*p,4)}, {vr(aV[c % 3])} offset:{i*1280 + 640*p}" for p in range(2)]
    def valu(q):
        L = []
        for i in range(8):
            L.append(f"v_exp_f32 {vr(Sx[q]+2*i)}, {vr(Sx[q]+2*i)}")
            L.append(f"v_exp_f32 {vr(Sx[q]+2*i+1)}, {vr(Sx[q]+2*i+1)}")
            if i: L.append(f"v_cvt_pk_bf16_f32 {vr(P[q]+i-1)}, {vr(Sx[q]+2*i-2)}, {vr(Sx[q]+2*i-1)}")
        L.append(f"v_cvt_pk_bf16_f32 {vr(P[q]+7)}, {vr(Sx[q]+14)}, {vr(Sx[q]+15)}")
        return L
    def phase(q, M, Kr, Vr):
        V = valu(q)
        cuts = [0, 5, 11, 17, 24]
        M = list(M) + [None]*(4 - len(M))
        for k in range(4):
            if M[k]: a(M[k])
            if k == 0:
                for r in Kr: a.lds(r, 'f')
            if k == 1 and Vr:
                a(f"s_mov_b64 exec, {sr(sEX,2)}")
                for r in Vr: a.lds(r, 'f')
                a("s_mov_b64 exec, -1")
            for v in V[cuts[k]:cuts[k+1]]: a(v)

    if OPT['aprio'] is not None:
        lo, hi = OPT['aprio']
        a(f"s_setprio {lo}")
        a(f"s_cmp_lt_u32 s{sWAVE}, 4")
        a(f"s_cbranch_scc1 {name}_ap")
        a(f"s_setprio {hi}")
        a.label(f"{name}_ap")
    a("; @m a_pre")
    a("s_barrier")
    a("; @m a_b0")
    def h_store(n):
        r_, tt_, t_ = p1.HOLD[n]
        a(f"s_cmp_lt_u32 s{sPUB}, {FH}")
        a(f"s_cbranch_scc1 {name}_noh{n}")
        a(f"buffer_store_dwordx4 {vr(r_,4)}, {vr(v16)}, {sr(dWS,4)}, s{p1.sH1 if tt_ else p1.sH0} offen offset:{1024*t_} sc1")
        a.label(f"{name}_noh{n}")
    for q in range(2):
        a(f"ds_read_b128 {vr(Qa[q],4)}, {vr(T[4])} offset:{1280*q}")
        a(f"ds_read_b32 {vr(Qb[q])}, {vr(T[5])} offset:{1280*q + 1024}")
    a(f"ds_read_b128 {vr(Ka[1],4)}, {vr(v16)} offset:{KS[0]}")
    a(f"ds_read_b32 {vr(Kb[1])}, {vr(vB8)} offset:{KS[0] + 1024}")
    for r in kread(0): a(r)
    a("s_waitcnt lgkmcnt(2)")
    for q in range(2):
        for m in qk(q, 1): a(m)
    a.nop(10)
    max16(Sx[0], T[1]); set_shift(T[1], 0)
    max16(Sx[1], T[2])
    a("s_waitcnt lgkmcnt(0)")
    M = qk(0, 0)
    a(M[0]); a(M[1])
    set_shift(T[2], 1)
    a("; @m a_go")
    NT = 32
    for t in range(NT):
        if t in BAR:
            a(f"; @m a_p{t}")
            if fused and t == BAR[1]:
                a("s_waitcnt vmcnt(0)")
                a("; @m a_hack")
            a("s_barrier")
            a(f"; @m a_q{t}")
        if t == 16:
            a(f"s_lshl_b32 s{sT0}, s{sQB}, 2")
            a(f"s_add_u32 s{sT0}, s{sT0}, s{sQG}")
            a(f"s_lshl_b32 s{sT0}, s{sT0}, 1")
            a(f"s_add_u32 s{sT1}, s{sT0}, s{sKH}")
            a(f"s_lshl_b32 s{sOB}, s{sT1}, 5")
            a(f"s_add_u32 s{sOB}, s{sOB}, s{sHEAD}")
            a(f"s_mul_i32 s{sOB}, s{sOB}, 1280")
            a(f"s_add_u32 s{sOB}, s{sOB}, {OF}")
            a(f"s_and_b32 s{sXO}, s{sT1}, 7")
            a(f"s_mul_i32 s{sXO}, s{sXO}, 3072")
            a(f"s_add_u32 s{sXO}, s{sXO}, {XCH}")
        if tail and t == 16:
            a(f"s_lshl_b32 s{sFO}, s{sT1}, 9")
            a(f"s_lshr_b32 s{sT0}, s{sHEAD}, 3")
            a(f"s_lshl_b32 s{sT0}, s{sT0}, 7")
            a(f"s_add_u32 s{sFO}, s{sFO}, s{sT0}")
            a(f"s_and_b32 s{sT0}, s{sHEAD}, 7")
            a(f"s_lshl_b32 s{sT0}, s{sT0}, 2")
            a(f"s_add_u32 s{sFO}, s{sFO}, s{sT0}")
            a(f"s_add_u32 s{sFO}, s{sFO}, {FO}")
            a(f"s_lshl_b32 s{sT1}, s{sT1}, 7")
            a(f"s_add_u32 s{sT1}, s{sT1}, {GG}")
            a(f"v_and_b32 {vr(T[0])}, 31, {vr(vL)}")
            a(f"v_lshlrev_b32 {vr(T[0])}, 2, {vr(T[0])}")
            a(f"buffer_load_dword {vr(vG)}, {vr(T[0])}, {sr(dWS,4)}, s{sT1} offen")
            out_tile(a)
            a(f"s_lshl_b32 s{sT1}, s{sQG}, 13")
            a(f"s_add_u32 s{sT1}, s{sT1}, {4*40960}")
            a(f"s_add_u32 s{sWB}, s{sWB}, s{sT1}")
        if tail and t == 26:
            a(f"s_cmp_eq_u32 s{sKH}, 0")
            a(f"s_cbranch_scc1 {name}_noearly")
            for k in range(NE):
                if k == 4: a(f"s_add_u32 s{sT0}, s{sWB}, 4096")
                a(f"buffer_load_dwordx4 {vr(WE+4*k,4)}, {vr(v16)}, {sr(dWS,4)}, s{sWB if k < 4 else sT0} offen offset:{1024*(k % 4)}")
            a.label(f"{name}_noearly")
        M = qk(1, t & 1) + (pv(1, (t-1) & 1, t == 1) if t else [])
        hs = OPT['hstart']
        if fused and hs <= 2*t < hs + 6: h_store(2*t - hs)
        if OPT['pcycle']: a(f"s_setprio {OPT['pcycle'](t, 0)}")
        phase(0, M, kread(t+1) if t + 1 < NT else [], vread(t))
        if OPT['pcycle'] and OPT['pcycle'](t, 0) != OPT['pcycle'](t, 1): a(f"s_setprio {OPT['pcycle'](t, 1)}")
        if fused and hs <= 2*t + 1 < hs + 6: h_store(2*t + 1 - hs)
        a.wait(lg='all')
        M = (qk(0, (t+1) & 1) if t + 1 < NT else []) + pv(0, t & 1, t == 0)
        phase(1, M, [], [])
    a("s_nop 0")
    for m in pv(1, (NT-1) & 1, False): a(m)
    a("; @m a_end")
    WL = Ka[0]
    a(f"s_xor_b32 s{sT2}, s{sKH}, 1")
    a(f"s_sub_u32 s{sT2}, s{sT2}, s{sKH}")
    a(f"s_mul_i32 s{sT2}, s{sT2}, 3072")
    a(f"s_add_u32 s{sT2}, s{sT2}, s{sXO}")
    a(f"v_add_u32 {vr(T[0])}, s{sT2}, {vr(v16)}")
    a(f"v_add_u32 {vr(T[1])}, s{sXO}, {vr(v16)}")
    a(f"v_lshlrev_b32 {vr(T[2])}, 3, {vr(vL)}")
    a(f"v_cmp_gt_u32 vcc, 32, {vr(vL)}")
    a(f"v_mov_b32 {vr(T[3])}, {OOB}")
    if tail: a("s_waitcnt vmcnt(0)")
    else: a("s_nop 0")
    a(f"v_cndmask_b32 {vr(T[2])}, {vr(T[3])}, {vr(T[2])}, vcc")
    a(f"s_cmp_eq_u32 s{sKH}, 0")
    a(f"s_cbranch_scc1 {name}_keep0")
    for i in range(3): a(f"ds_write_b128 {vr(T[0])}, {vr(O[0]+4*i,4)} offset:{1024*i}")
    for i in range(4): a(f"v_mov_b32 {vr(Qa[0]+i)}, {vr(Qa[1]+i)}")
    a(f"v_mov_b32 {vr(Qb[0])}, {vr(Qb[1])}")
    a("s_waitcnt lgkmcnt(0)")
    for i in range(0, 12, 2): a(f"v_pk_mov_b32 {vr(O[0]+i,2)}, {vr(O[1]+i,2)}, {vr(O[1]+i,2)} op_sel:[0,1]")
    a(f"s_branch {name}_sent")
    a.label(f"{name}_keep0")
    for i in range(3): a(f"ds_write_b128 {vr(T[0])}, {vr(O[1]+4*i,4)} offset:{1024*i}")
    a.label(f"{name}_sent")
    a("s_waitcnt lgkmcnt(0)")
    a("s_barrier")
    a("; @m a_b6")
    for i in range(3): a(f"ds_read_b128 {vr(O[1]+4*i,4)}, {vr(T[1])} offset:{1024*i}")
    a("s_waitcnt lgkmcnt(0)")
    for i in range(0, 12, 2):
        a(f"v_pk_add_f32 {vr(O[0]+i,2)}, {vr(O[0]+i,2)}, {vr(O[1]+i,2)}")
    def finish(check):
        l0, l1 = T[3], T[4]
        N_ = O[1]
        a(f"v_mov_b32 {vr(l0)}, {vr(O[0]+8)}")
        a(f"v_mov_b32 {vr(l1)}, {vr(O[0]+8)}")
        a("s_nop 1")
        a(f"v_permlane32_swap_b32 {vr(l0)}, {vr(l1)}")
        a(f"v_rcp_f32 {vr(l0)}, {vr(l1)}")
        a("s_nop 0")
        if tail: a(f"v_mul_f32 {vr(l0)}, {vr(l0)}, {vr(vG)}")
        for i in range(12):
            a(f"v_mul_f32 {vr(N_+i)}, {vr(O[0]+i)}, {vr(l0)}")
        for i in range(6):
            a(f"v_cvt_pk_bf16_f32 {vr(N_+i)}, {vr(N_+2*i)}, {vr(N_+2*i+1)}")
        a(f"buffer_store_dwordx4 {vr(N_,4)}, {vr(v16)}, {sr(dWS,4)}, s{sOB} offen{st}")
        a(f"buffer_store_dwordx2 {vr(N_+4,2)}, {vr(T[2])}, {sr(dWS,4)}, s{sOB} offen offset:1024{st}")
        if check:
            a(f"v_max3_f32 {vr(T[5])}, abs({vr(O[0])}), abs({vr(O[0]+1)}), abs({vr(l1)})")
            for i in range(2, 12, 2):
                a(f"v_max3_f32 {vr(T[5])}, abs({vr(O[0]+i)}), abs({vr(O[0]+i+1)}), {vr(T[5])}")
            a(f"v_add_f32 {vr(T[0])}, {vr(O[0])}, {vr(O[0]+1)}")
            for i in range(2, 12):
                a(f"v_add_f32 {vr(T[0])}, {vr(T[0])}, {vr(O[0]+i)}")
            a(f"v_mov_b32 {vr(T[1])}, {f2u(2.0**100):#x}")
            a(f"v_cmp_nlt_f32 {sr(sM0,2)}, {vr(T[5])}, {vr(T[1])}")
            a(f"v_cmp_u_f32 {sr(sM1,2)}, {vr(T[0])}, {vr(T[0])}")
            a("s_nop 1")
            a(f"s_or_b64 {sr(sM0,2)}, {sr(sM0,2)}, {sr(sM1,2)}")
            a(f"s_cbranch_scc1 {name}_slow")
        if not tail: a("s_endpgm")
        elif not check:
            a(f"s_branch {name}_tail")
    finish(True)
    if tail: out_proj(a, name, vL, T, v16, WE, WL, Qa[0], O)

    a.label(f"{name}_slow")
    a(f"v_mov_b32 {vr(Qb[0]+1)}, 0")
    a(f"v_mov_b32 {vr(T[1])}, 0xff800000")
    a(f"s_mov_b32 s{sI}, s{sKB}")
    a(f"s_add_u32 s{sT3}, s{sKB}, 81920")
    a.label(f"{name}_slow1")
    a(f"buffer_load_dwordx4 {vr(Ka[0],4)}, {vr(v16)}, {sr(dWS,4)}, s{sI} offen")
    a(f"buffer_load_dword {vr(Kb[0])}, {vr(vB8)}, {sr(dWS,4)}, s{sI} offen offset:1024")
    a("s_waitcnt vmcnt(0)")
    for m in qk(0, 0): a(m)
    a.nop(12)
    max16(Sx[0], T[1], T[1])
    a(f"s_add_u32 s{sI}, s{sI}, 1280")
    a(f"s_cmp_lt_u32 s{sI}, s{sT3}")
    a(f"s_cbranch_scc1 {name}_slow1")
    set_shift(T[1], 0)
    for i in range(16): a(f"v_mov_b32 {vr(O[0]+i)}, 0")
    a(f"s_mov_b32 s{sI}, s{sKB}")
    a(f"s_mov_b32 s{sT0}, s{sVB}")
    a.label(f"{name}_slow2")
    a(f"buffer_load_dwordx4 {vr(Ka[0],4)}, {vr(v16)}, {sr(dWS,4)}, s{sI} offen")
    a(f"buffer_load_dword {vr(Kb[0])}, {vr(vB8)}, {sr(dWS,4)}, s{sI} offen offset:1024")
    a(f"s_mov_b64 exec, {sr(sEX,2)}")
    a(f"buffer_load_dwordx4 {vr(Vf[0],4)}, {vr(vVo)}, {sr(dWS,4)}, s{sT0} offen")
    a(f"buffer_load_dwordx4 {vr(Vf[0]+4,4)}, {vr(vVo)}, {sr(dWS,4)}, s{sT0} offen offset:640")
    a("s_mov_b64 exec, -1")
    a("s_waitcnt vmcnt(0)")
    for m in qk(0, 0): a(m)
    a.nop(12)
    for v in valu(0): a(v)
    a.nop(2)
    for m in pv(0, 0, False): a(m)
    a(f"s_add_u32 s{sI}, s{sI}, 1280")
    a(f"s_add_u32 s{sT0}, s{sT0}, 1280")
    a(f"s_cmp_lt_u32 s{sI}, s{sT3}")
    a(f"s_cbranch_scc1 {name}_slow2")
    a.nop(12)
    finish(False)

def dma(a, v16, src, srcoff, lds_s, ldsoff, n, tag):
    j = 0
    while j < n:
        if lds_s is None: a(f"s_mov_b32 m0, {ldsoff + 1024*j}")
        else: a(f"s_add_u32 m0, s{lds_s}, {ldsoff + 1024*j}")
        a(f"s_add_u32 s{sT0}, s{src}, {srcoff + 1024*j}")
        for i in range(min(4, n - j)):
            a.vmem(f"buffer_load_dwordx4 {vr(v16)}, {sr(dWS,4)}, s{sT0} offen offset:{1024*i} lds", tag)
        j += 4

def out_addr(a, vL, T, tile_s, aR, aOut):
    a(f"v_and_b32 {vr(T[2])}, 31, {vr(vL)}")
    a(f"v_lshlrev_b32 {vr(T[3])}, 2, {vr(T[2])}")
    a(f"s_lshl_b32 s{sT0}, s{sTB}, 7")
    a(f"s_add_u32 s{sT0}, s{sT0}, {GG}")
    a.vmem(f"buffer_load_dword {vr(T[5])}, {vr(T[3])}, {sr(dWS,4)}, s{sT0} offen", ('g', 0))
    a(f"v_lshrrev_b32 {vr(T[4])}, 5, {vr(vL)}")
    a(f"v_mul_u32_u24 {vr(aR)}, 1280, {vr(T[4])}")
    a(f"v_lshl_add_u32 {vr(aR)}, {vr(T[2])}, 3, {vr(aR)}")
    a(f"s_mul_i32 s{sT1}, s{sCG}, 5")
    a(f"s_add_u32 s{sT1}, s{sT1}, {tile_s}")
    a(f"s_lshl_b32 s{sT1}, s{sT1}, 6")
    a(f"s_mul_i32 s{sT2}, s{sTB}, {32*1280}")
    a(f"s_add_u32 s{sOB}, s{sT1}, s{sT2}")
    a(f"v_mul_u32_u24 {vr(aOut)}, 1280, {vr(T[2])}")
    a(f"v_lshl_add_u32 {vr(aOut)}, {vr(T[4])}, 4, {vr(aOut)}")
    srd(a, dO, sOUT, S*D*2)

def init_acc(a, T, v16, tile_s, ACC, TMP, wait_gate):
    assert all(65536 <= d for d in DUMP)
    a(f"s_lshl_b32 s{sT0}, {tile_s}, 11")
    a(f"s_add_u32 s{sT0}, s{sT0}, 65536")
    a(f"v_add_u32 {vr(T[3])}, s{sT0}, {vr(v16)}")
    a(f"v_add_u32 {vr(T[0])}, 65536, {vr(T[3])}")
    for rnd in range(2):
        for h in range(2):
            d = DUMP[2*rnd + h]
            for i in range(2):
                a(f"ds_read_b128 {vr(TMP+8*h+4*i,4)}, {vr(T[3] if d < 131072 else T[0])} offset:{(d & 65535) + 1024*i}")
        a("s_waitcnt lgkmcnt(0)")
        for h in range(2):
            for i in range(8):
                r = TMP + 8*h + i
                if rnd == 0 and h == 0:
                    a(f"v_lshlrev_b32 {vr(ACC+2*i)}, 16, {vr(r)}")
                    a(f"v_and_b32 {vr(ACC+2*i+1)}, 0xffff0000, {vr(r)}")
                else:
                    a(f"v_lshlrev_b32 {vr(T[1])}, 16, {vr(r)}")
                    a(f"v_and_b32 {vr(r)}, 0xffff0000, {vr(r)}")
                    a(f"v_add_f32 {vr(ACC+2*i)}, {vr(ACC+2*i)}, {vr(T[1])}")
                    a(f"v_add_f32 {vr(ACC+2*i+1)}, {vr(ACC+2*i+1)}, {vr(r)}")
    wait_gate()
    a(f"v_sub_f32 {vr(T[5])}, 1.0, {vr(T[5])}")
    for i in range(16): a(f"v_mul_f32 {vr(ACC+i)}, {vr(ACC+i)}, {vr(T[5])}")

def store_out(a, ACC, TMP, aOut):
    for i in range(8):
        a(f"v_cvt_pk_bf16_f32 {vr(TMP+i)}, {vr(ACC+2*i)}, {vr(ACC+2*i+1)}")
    a("s_nop 1")
    for p in range(2):
        a(f"v_permlane32_swap_b32 {vr(TMP+4*p)}, {vr(TMP+4*p+2)}")
        a(f"v_permlane32_swap_b32 {vr(TMP+4*p+1)}, {vr(TMP+4*p+3)}")
    for p in range(2):
        a(f"buffer_store_dwordx4 {vr(TMP+4*p,4)}, {vr(aOut)}, {sr(dO,4)}, s{sOB} offen offset:{32*p}{OPT['sto']}")
    a("s_endpgm")

def out_proj(a, name, vL, T, v16, WE, WL, Q0, O):
    ACC = O[0]
    OR = [O[1] + 4*i for i in range(4)]
    aO, aR, aR2, aOut = range(v16 + 1, v16 + 5)
    RQ = XCH
    a.label(f"{name}_tail")
    a.vm = []; a.lg = []
    a(f"v_mov_b32 {vr(T[0])}, 0")
    a(f"v_mov_b32 {vr(T[1])}, 1")
    a("; @m t_st")
    a("s_waitcnt vmcnt(0)")
    a("s_mov_b64 exec, 1")
    a(f"buffer_store_dword {vr(T[1])}, {vr(T[0])}, {sr(dWS,4)}, s{sFO} offen sc1")
    a("s_mov_b64 exec, -1")
    a("; @m t_flag")
    a(f"s_mul_i32 s{sT3}, s{sQG}, 10240")
    a(f"s_cmp_ge_u32 s{sQG}, 2")
    a(f"s_cselect_b32 s{sT1}, {OHI - 20480}, 0")
    a(f"s_add_u32 s{sXO}, s{sT3}, s{sT1}")
    a(f"s_cmp_lg_u32 s{sKH}, 0")
    a(f"s_cbranch_scc1 {name}_quarter")
    a(f"v_and_b32 {vr(T[0])}, 7, {vr(vL)}")
    a(f"v_lshlrev_b32 {vr(T[0])}, 2, {vr(T[0])}")
    a(f"s_lshl_b32 s{sT1}, s{sTB}, 9")
    a(f"s_lshl_b32 s{sT2}, s{sQG}, 7")
    a(f"s_add_u32 s{sT1}, s{sT1}, s{sT2}")
    a(f"s_add_u32 s{sT1}, s{sT1}, {FO}")
    poll(a, f"{name}_poll3", T[0], T[1], 1, dWS, f"s{sT1}", sleep=OPT['osleep'])
    a("; @m t_o")
    a(f"s_mul_i32 s{sT1}, s{sTB}, 40960")
    a(f"s_add_u32 s{sT1}, s{sT1}, s{sT3}")
    dma(a, v16, sT1, OF, sXO, 0, 10, 'o')
    a.wait(vm='all')
    a("s_barrier")
    a("s_endpgm")
    a.label(f"{name}_quarter")
    a(f"s_add_u32 s{sT0}, s{sWB}, {7*1024}")
    a(f"buffer_load_dwordx4 {vr(WL,4)}, {vr(v16)}, {sr(dWS,4)}, s{sT0} offen")
    a(f"s_mul_i32 s{sT0}, s{sQG}, {2048 - 8192}")
    a(f"s_add_u32 s{sT0}, s{sT0}, s{sWB}")
    a(f"s_add_u32 s{sT0}, s{sT0}, {32*1024}")
    for i in range(2):
        a(f"buffer_load_dwordx4 {vr(WL+4+4*i,4)}, {vr(v16)}, {sr(dWS,4)}, s{sT0} offen offset:{1024*i}")
    out_addr(a, vL, T, "4", aR, aOut)
    a(f"v_add_u32 {vr(aO)}, s{sXO}, {vr(v16)}")
    a(f"v_add_u32 {vr(aR)}, s{sXO}, {vr(aR)}")
    a(f"s_lshl_b32 s{sT0}, s{sQG}, 12")
    a(f"s_add_u32 s{sT0}, s{sT0}, {RQ - 4096}")
    a(f"v_add_u32 {vr(aR2)}, s{sT0}, {vr(v16)}")
    a(f"s_cmp_lg_u32 s{sQG}, 0")
    a(f"s_cbranch_scc1 {name}_zero")
    init_acc(a, T, v16, "4", ACC, OR[0], lambda: a("s_waitcnt vmcnt(0)"))
    a(f"s_branch {name}_inited")
    a.label(f"{name}_zero")
    for i in range(16): a(f"v_mov_b32 {vr(ACC+i)}, 0")
    a.label(f"{name}_inited")
    a("s_setprio 3")
    def qread(k):
        f = OR[k % 4]
        if k < 8: a.lds(f"ds_read_b128 {vr(f,4)}, {vr(aO)} offset:{k*1280}", k)
        else:
            for i in range(2):
                a.lds(f"ds_read_b64 {vr(f+2*i,2)}, {vr(aR)} offset:{(4*(k - 8) + 2*i)*1280 + 1024}", k)
    a("s_waitcnt vmcnt(0)")
    a("s_barrier")
    for k in range(3): qread(k)
    for k in range(10):
        a.wait(lg=k)
        w = WE + 4*k if k < NE else WL + 4*(k - NE)
        a(f"v_mfma_f32_32x32x16_bf16 {vr(ACC,16)}, {vr(w,4)}, {vr(OR[k % 4],4)}, {vr(ACC,16)}")
        if k + 3 < 10: qread(k + 3)
    a(f"s_cmp_eq_u32 s{sQG}, 0")
    a(f"s_cbranch_scc1 {name}_q0")
    a.nop(10)
    for q in range(4): a(f"ds_write_b128 {vr(aR2)}, {vr(ACC+4*q,4)} offset:{1024*q}")
    a("s_waitcnt lgkmcnt(0)")
    a("s_barrier")
    a("s_endpgm")
    a.label(f"{name}_q0")
    a("s_barrier")
    for i in range(12): a(f"ds_read_b128 {vr(WL+4*i,4)}, {vr(aR2)} offset:{4096 + 1024*i}")
    for part in range(3):
        a(f"s_waitcnt lgkmcnt({8 - 4*part})")
        for i in range(0, 16, 2):
            a(f"v_pk_add_f32 {vr(ACC+i,2)}, {vr(ACC+i,2)}, {vr(WL+16*part+i,2)}")
    store_out(a, ACC, OR[0], aOut)

def aux(a, name, vL, T, base, st, fused):
    helper = OPT['helper']
    tail = fused and OPT['tail']
    a.vm = []; a.lg = []
    rg = Regs(base, 168)
    v16 = rg.alloc('v16'); aH = rg.alloc('aH'); aWd = rg.alloc('aWd', 5)
    FR = [rg.alloc(f'fr{i}', 24, 2) for i in range(3)]
    ACC = rg.alloc('acc', 80, 2)
    decode(a)
    a(f"s_sub_u32 s{sHW}, s{sWAVE}, 8")
    a(f"v_lshlrev_b32 {vr(v16)}, 4, {vr(vL)}")
    def dma(src, srcoff, lds_s, ldsoff, n, tag): globals()['dma'](a, v16, src, srcoff, lds_s, ldsoff, n, tag)
    a(f"s_cmp_lg_u32 s{sHW}, 0")
    a(f"s_cbranch_scc1 {name}_first_done")
    if fused:
        a("; @m x_p1")
        a(f"s_lshr_b32 s{sT1}, s{sHEAD}, 4")
        a(f"s_lshl_b32 s{sT1}, s{sT1}, 7")
        a(f"s_lshl_b32 s{sT2}, s{sXCD}, 10")
        a(f"s_add_u32 s{sT1}, s{sT1}, s{sT2}")
        a(f"s_add_u32 s{sT1}, s{sT1}, {FQ}")
        a(f"v_and_b32 {vr(T[0])}, 15, {vr(vL)}")
        a(f"v_lshlrev_b32 {vr(T[0])}, 2, {vr(T[0])}")
        a(f"v_bfe_u32 {vr(T[1])}, {vr(vL)}, 4, 1")
        a(f"v_lshlrev_b32 {vr(T[1])}, 8, {vr(T[1])}")
        a(f"v_add3_u32 {vr(T[0])}, {vr(T[0])}, {vr(T[1])}, 0")
        a(f"v_add_u32 {vr(T[0])}, 256, {vr(T[0])}")
        a(f"v_and_b32 {vr(T[1])}, 1, {vr(vL)}")
        a(f"s_lshl_b32 s{sT2}, s{sQB}, 1")
        a(f"v_add_lshl_u32 {vr(T[1])}, {vr(T[1])}, s{sT2}, 2")
        a(f"v_cmp_gt_u32 vcc, 32, {vr(vL)}")
        a("s_nop 1")
        a(f"v_cndmask_b32 {vr(T[0])}, {vr(T[1])}, {vr(T[0])}, vcc")
        if OPT['ppoll']: poll_fast(a, f"{name}_poll1", T[0], T[1], f"s{sT1}")
        else: poll(a, f"{name}_poll1", T[0], T[1], 1, dWS, f"s{sT1}")
        a("; @m x_kv")
    a(f"s_mul_i32 s{sT1}, s{sQB}, 10240")
    a(f"s_add_u32 s{sT1}, s{sT1}, s{sKB}")
    dma(sT1, 0, None, QS, 10, 'c0')
    if OPT['small0']:
        for base_ in (0, 10):
            dma(sKB, KF + 1024*base_, None, KS[0] + 1024*base_, 4, 'c0')
            dma(sVB, 1024*base_, None, VS[0] + 1024*base_, 3, 'c0')
        for base_ in (0, 10):
            dma(sKB, KF + 1024*(base_ + 4), None, KS[0] + 1024*(base_ + 4), 6, 'c1')
            dma(sVB, 1024*(base_ + 3), None, VS[0] + 1024*(base_ + 3), 7, 'c1')
        a.wait(vm='c0')
        a.vm = []
    else:
        dma(sKB, KF, None, KS[0], 20, 'c0')
        dma(sVB, 0, None, VS[0], 20, 'c0')
        a.wait(vm='all')
    a.label(f"{name}_first_done")
    a(f"s_mul_i32 s{sL5}, s{sHW}, 5120")
    a(f"s_add_u32 s{sKB}, s{sKB}, s{sL5}")
    a(f"s_add_u32 s{sVB}, s{sVB}, s{sL5}")
    def chunk(c):
        dma(sKB, KF + c*20480, sL5, KS[c], 5, ('c', c))
        dma(sVB, c*20480, sL5, VS[c], 5, ('c', c))
    out_tile(a)
    a(f"s_mul_i32 s{sT0}, s{sTB}, {108*1024}")
    a(f"s_add_u32 s{sT0}, s{sT0}, {HF}")
    a(f"v_add_u32 {vr(aH)}, s{sT0}, {vr(v16)}")
    a(f"s_mul_i32 s{sT0}, s{sCG}, {5*110592}")
    a(f"s_add_u32 s{sT0}, s{sT0}, {WDF}")
    for i in range(5):
        a(f"v_add_u32 {vr(aWd+i)}, s{sT0}, {vr(v16)}")
        if i < 4: a(f"s_add_u32 s{sT0}, s{sT0}, 110592")
    a(f"s_mul_i32 s{sKO}, s{sHW}, {27*1024}")
    def dload_parts(k):
        f = FR[k % 3]
        o = 1024*(k % 4)
        L = []
        for i in range(5):
            L.append(f"buffer_load_dwordx4 {vr(f+4+4*i,4)}, {vr(aWd+i)}, {sr(dWS,4)}, s{sKO} offen offset:{o}")
        L.append(f"buffer_load_dwordx4 {vr(f,4)}, {vr(aH)}, {sr(dWS,4)}, s{sKO} offen offset:{o}")
        return L
    def dload(k):
        if k and k % 4 == 0: a(f"s_add_u32 s{sKO}, s{sKO}, 4096")
        for l in dload_parts(k): a.vmem(l, ('d', k))
    def dstep(k):
        a.wait(vm=('d', k))
        f = FR[k % 3]
        nxt = k + 3 < 27
        if nxt and OPT['inter'] and (k + 3) % 4 == 0: a(f"s_add_u32 s{sKO}, s{sKO}, 4096")
        L = dload_parts(k + 3)
        for i in range(5):
            a(f"v_mfma_f32_32x32x16_bf16 {vr(ACC+16*i,16)}, {vr(f+4+4*i,4)}, {vr(f,4)}, {'0' if k == 0 else vr(ACC+16*i,16)}")
            if nxt and OPT['inter']: a.vmem(L[i], ('d', k + 3))
            if OPT['xsleep']: a(f"s_sleep {OPT['xsleep']}")
        if nxt:
            if OPT['inter']: a.vmem(L[5], ('d', k + 3))
            else: dload(k + 3)
    a(f"s_setprio {OPT['cprio']}")
    a("; @m x_c0")
    a("s_barrier")
    a.vm = ['rest']
    chunk(1); chunk(2)
    a.wait(vm='rest')
    a("; @m x_b1")
    a("s_barrier")
    a.wait(vm=('c', 1))
    a("s_barrier")
    if fused:
        a(f"s_cmp_lg_u32 s{sHW}, 1")
        a(f"s_cbranch_scc1 {name}_nohf")
        a(f"s_cmp_ge_u32 s{sSLOT}, 30")
        a(f"s_cbranch_scc1 {name}_nohf")
        a(f"s_cmp_lt_u32 s{sCOL}, 6")
        a(f"s_cbranch_scc1 {name}_nohf")
        a(f"s_lshl_b32 s{sT0}, s{sRB}, 7")
        a(f"s_lshl_b32 s{sT1}, s{sCOL}, 2")
        a(f"s_add_u32 s{sT0}, s{sT0}, s{sT1}")
        a(f"s_add_u32 s{sT0}, s{sT0}, {FH - 24}")
        a(f"v_mov_b32 {vr(T[0])}, 0")
        a(f"v_mov_b32 {vr(T[1])}, 1")
        a("s_mov_b64 exec, 1")
        a(f"buffer_store_dword {vr(T[1])}, {vr(T[0])}, {sr(dWS,4)}, s{sT0} offen sc1")
        a("s_mov_b64 exec, -1")
        a.label(f"{name}_nohf")
    if fused:
        a(f"v_mov_b32 {vr(T[2])}, {CTR + 4}")
        a(f"s_cmp_lg_u32 s{sHW}, 0")
        a(f"s_cbranch_scc1 {name}_hwait")
        a(f"v_min_u32 {vr(T[0])}, 8, {vr(vL)}")
        a(f"v_lshlrev_b32 {vr(T[0])}, 2, {vr(T[0])}")
        a(f"s_lshr_b32 s{sT1}, s{sTB}, 2")
        a(f"s_lshl_b32 s{sT1}, s{sT1}, 7")
        a(f"s_add_u32 s{sT1}, s{sT1}, {FH}")
        poll(a, f"{name}_poll2", T[0], T[1], 1, dWS, f"s{sT1}")
        a(f"v_and_b32 {vr(T[0])}, 15, {vr(vL)}")
        a(f"v_lshlrev_b32 {vr(T[0])}, 2, {vr(T[0])}")
        a(f"s_lshl_b32 s{sT1}, s{sXCD}, 10")
        a(f"s_add_u32 s{sT1}, s{sT1}, {FM}")
        poll(a, f"{name}_poll2m", T[0], T[1], 1, dWS, f"s{sT1}")
        a(f"v_mov_b32 {vr(T[1])}, 1")
        a(f"ds_write_b32 {vr(T[2])}, {vr(T[1])}")
        a(f"s_branch {name}_hgo")
        a.label(f"{name}_hwait")
        a(f"s_mov_b32 s{sTO}, 0x40000")
        a("s_waitcnt vmcnt(0)")
        a.label(f"{name}_hspin")
        a(f"ds_read_b32 {vr(T[1])}, {vr(T[2])}")
        a("s_waitcnt lgkmcnt(0)")
        a(f"v_cmp_ne_u32 vcc, 1, {vr(T[1])}")
        a(f"s_cbranch_vccz {name}_hgo")
        a("s_sleep 4")
        a(f"s_sub_u32 s{sTO}, s{sTO}, 1")
        a(f"s_cbranch_scc0 {name}_hspin")
        a.label(f"{name}_hgo")
        a.vm = []
    a("; @m x_h")
    cuts = OPT['dcuts']
    dload(0); dload(1); dload(2)
    if OPT['xprio'] != OPT['cprio']: a(f"s_setprio {OPT['xprio']}")
    for k in range(0, cuts[0]): dstep(k)
    a("; @m x_b2")
    a("s_barrier")
    chunk(3)
    for k in range(cuts[0], cuts[1]): dstep(k)
    a.wait(vm=lambda t: t[0] == 'c')
    a("; @m x_b3")
    a("s_barrier")
    for k in range(cuts[1], cuts[2]): dstep(k)
    a("; @m x_b4")
    a("s_barrier")
    for k in range(cuts[2], 27): dstep(k)
    a("; @m x_down")
    if OPT['xprio'] != OPT['cprio']: a(f"s_setprio {OPT['cprio']}")
    a(f"s_mov_b32 s{sT1}, {DUMP[0]}")
    for w in range(1, 4):
        a(f"s_cmp_eq_u32 s{sHW}, {w}")
        a(f"s_cselect_b32 s{sT1}, {DUMP[w]}, s{sT1}")
    a(f"v_add_u32 {vr(T[0])}, s{sT1}, {vr(v16)}")
    a.nop(4)
    for t in range(5):
        for h in range(2):
            d = FR[0] + 8*t + 4*h
            for i in range(4):
                a(f"v_cvt_pk_bf16_f32 {vr(d+i)}, {vr(ACC+16*t+8*h+2*i)}, {vr(ACC+16*t+8*h+2*i+1)}")
            a(f"ds_write_b128 {vr(T[0])}, {vr(d,4)} offset:{2048*t + 1024*h}")
    a("s_waitcnt lgkmcnt(0)")
    AC2, OR, W0, NW0 = 16, [32, 36, 40, 44], 48, 30
    aO, aR, aR2, aOut = aH, aWd, aWd + 1, aWd + 2
    a(f"s_mul_i32 s{sT0}, s{sHW}, 40960")
    a(f"s_add_u32 s{sWB}, s{sWB}, s{sT0}")
    out_addr(a, vL, T, f"s{sHW}", aR, aOut)
    def wload(k):
        if k % 4 == 0 or k == NW0: a(f"s_add_u32 s{sKO}, s{sWB}, {4096*(k // 4)}")
        a.vmem(f"buffer_load_dwordx4 {vr(W0+4*(k % NW0),4)}, {vr(v16)}, {sr(dWS,4)}, s{sKO} offen offset:{1024*(k % 4)}", ('w', k))
    for k in range(NW0): wload(k)
    a(f"v_add_u32 {vr(aO)}, {OHI}, {vr(v16)}")
    a(f"v_add_u32 {vr(aR2)}, {OHI}, {vr(aR)}")
    a("; @m x_wl")
    a("s_setprio 0")
    a("s_barrier")
    a("; @m x_b6")
    init_acc(a, T, v16, f"s{sHW}", AC2, OR[0], lambda: a.wait(vm=('g', 0)))
    def oread(k):
        f = OR[k % 4]
        if k < 32:
            a.lds(f"ds_read_b128 {vr(f,4)}, {vr(v16 if k < 16 else aO)} offset:{(k % 16)*1280}", k)
        else:
            g = k - 32
            for i in range(2):
                a.lds(f"ds_read_b64 {vr(f+2*i,2)}, {vr(aR if g < 4 else aR2)} offset:{(4*(g % 4) + 2*i)*1280 + 1024}", k)
    a.wait(vm='all')
    a("s_barrier")
    a("; @m x_b7")
    for k in range(3): oread(k)
    for k in range(40):
        a.wait(vm=('w', k), lg=k)
        a(f"v_mfma_f32_32x32x16_bf16 {vr(AC2,16)}, {vr(W0+4*(k % NW0),4)}, {vr(OR[k % 4],4)}, {vr(AC2,16)}")
        if k + 3 < 40: oread(k + 3)
        if k + NW0 < 40: wload(k + NW0)
        if k == OPT['b8']: a("s_barrier")
    a("; @m x_chain")
    a.nop(12)
    store_out(a, AC2, OR[0], aOut)
```
